```python
import torch

def _softmax(x, axis=-1):
    return torch.softmax(x, dim=axis)

def _gelu(x):
    return torch.nn.functional.gelu(x, approximate='tanh')

def _silu(x):
    return torch.nn.functional.silu(x)

def _sigmoid(x):
    return torch.sigmoid(x)

def _layernorm(x, axis=-1, eps=1e-05):
    m = x.mean(dim=axis, keepdim=True)
    v = x.var(dim=axis, keepdim=True, unbiased=False)
    return (x - m) / torch.sqrt(v + eps)

def _scatter_add(tgt, idx, src, axis=0):
    return tgt.clone().index_add_(axis, idx, src)

def _segment_sum(src, seg, n):
    out = torch.zeros((n,) + src.shape[1:], dtype=src.dtype)
    return out.index_add_(0, seg, src)

def _pad(x, pw):
    flat = tuple((v for pair in reversed(pw) for v in pair))
    return torch.nn.functional.pad(x, flat)
kernel_name = 'interleave_layers__spectral_fnet__mixer_gmlp__prompt'

def setup_inputs():

    _w = lambda a: (lambda t: t.to(torch.bfloat16) if t.is_floating_point() else t)(torch.as_tensor(a))

    def _A_setup():
        B, S, D = (1, 2048, 448)
        ns = torch.arange(S)[:, None] * torch.arange(S)[None, :]
        nd = torch.arange(D)[:, None] * torch.arange(D)[None, :]
        Ws_re = torch.cos(-2.0 * torch.pi * ns / S).to(float)
        Ws_im = torch.sin(-2.0 * torch.pi * ns / S).to(float)
        Wd_re = torch.cos(-2.0 * torch.pi * nd / D).to(float)
        Wd_im = torch.sin(-2.0 * torch.pi * nd / D).to(float)
        return {'x': _w((lambda *s: torch.randn(*s, dtype=torch.bfloat16) * 0.05)(B, S, D)), 'dft_seq_re': _w(Ws_re), 'dft_seq_im': _w(Ws_im), 'dft_hid_re': _w(Wd_re), 'dft_hid_im': _w(Wd_im)}
    _A_in = _A_setup()

    def _B_setup():
        B, S, D, F = (1, 2048, 448, 1792)
        Fh = F // 2
        return {'x': _w((lambda *s: torch.randn(*s, dtype=torch.bfloat16) * 0.05)(B, S, D)), 'w_in': _w((lambda *s: torch.randn(*s, dtype=torch.bfloat16) * 1.6)(D, 2 * Fh)), 'w_sp': _w(0.01 * (lambda *s: torch.randn(*s, dtype=torch.bfloat16) * 1.6)(S, S)), 'b_sp': _w(1.0 + 0.01 * (lambda *s: torch.randn(*s, dtype=torch.bfloat16) * 1.6)(S)), 'w_out': _w((lambda *s: torch.randn(*s, dtype=torch.bfloat16) * 1.6)(Fh, D))}
    _B_in = _B_setup()
    return {'A_x': _A_in['x'], 'A_dft_seq_re': _A_in['dft_seq_re'], 'A_dft_seq_im': _A_in['dft_seq_im'], 'A_dft_hid_re': _A_in['dft_hid_re'], 'A_dft_hid_im': _A_in['dft_hid_im'], 'B_x': _B_in['x'], 'B_w_in': _B_in['w_in'], 'B_w_sp': _B_in['w_sp'], 'B_b_sp': _B_in['b_sp'], 'B_w_out': _B_in['w_out']}

def reference(A_x, A_dft_seq_re, A_dft_seq_im, A_dft_hid_re, A_dft_hid_im, B_x, B_w_in, B_w_sp, B_b_sp, B_w_out):

    def _A_ref(x, dft_seq_re, dft_seq_im, dft_hid_re, dft_hid_im):
        a = torch.einsum('bsd,ed->bse', x, dft_hid_re)
        b = torch.einsum('bsd,ed->bse', x, dft_hid_im)
        y = torch.einsum('ts,bse->bte', dft_seq_re, a) - torch.einsum('ts,bse->bte', dft_seq_im, b)
        return y

    def _B_ref(x, w_in, w_sp, b_sp, w_out):
        B, S, D = x.shape
        F = w_in.shape[-1]
        Fh = F // 2
        z = _gelu(torch.einsum('bsd,df->bsf', x, w_in))
        z1 = z[..., :Fh].clone()
        z2 = _layernorm(z[..., Fh:], axis=-1)
        g = torch.einsum('ts,bsf->btf', w_sp, z2) + b_sp[None, :, None]
        return torch.einsum('bsf,fd->bsd', z1 * g, w_out)
    x = A_x
    x = x + _A_ref(_layernorm(x, axis=-1), A_dft_seq_re, A_dft_seq_im, A_dft_hid_re, A_dft_hid_im)
    x = x + _B_ref(_layernorm(x, axis=-1), B_w_in, B_w_sp, B_b_sp, B_w_out)
    x = x + _A_ref(_layernorm(x, axis=-1), A_dft_seq_re, A_dft_seq_im, A_dft_hid_re, A_dft_hid_im)
    x = x + _B_ref(_layernorm(x, axis=-1), B_w_in, B_w_sp, B_b_sp, B_w_out)
    return x
```

```python
import re

REG_RE = re.compile(r'^(-|\|)?([vas])(?:(\d+)|\[(\d+):(\d+)\])\|?$')
TRANS = ('v_exp_f32', 'v_log_f32', 'v_rcp_f32', 'v_rsq_f32', 'v_sqrt_f32', 'v_sin_f32', 'v_cos_f32')


def regs_of(op):
    op = op.strip()
    if op == 'vcc':
        return [('s', 'vcc')]
    if op == 'exec':
        return [('s', 'exec')]
    if op == 'm0':
        return [('s', 'm0')]
    m = REG_RE.match(op)
    if not m:
        return []
    k = m.group(2)
    if m.group(3) is not None:
        return [(k, int(m.group(3)))]
    return [(k, i) for i in range(int(m.group(4)), int(m.group(5)) + 1)]


def split_ops(s):
    ops, mods, depth, cur = [], [], 0, ''
    for ch in s + ',':
        if ch in '[(':
            depth += 1
        elif ch in '])':
            depth -= 1
        if ch == ',' and depth == 0:
            parts = cur.split()
            if parts:
                ops.append(parts[0])
                mods += parts[1:]
            cur = ''
        else:
            cur += ch
    return ops, mods


class Ins:
    __slots__ = ('text', 'mn', 'ops', 'mods', 'defs', 'uses', 'kind', 'cond', 'srcc', 'passes', 'wide', 'data', 'tok')

    def __init__(self, text, cond=False):
        self.text = text
        self.cond = cond
        self.tok = None
        self.srcc = []
        self.passes = 0
        self.wide = False
        self.data = []
        t = text.strip()
        if t.endswith(':') or t.startswith('.') or t.startswith(';'):
            self.mn, self.ops, self.mods, self.defs, self.uses = t, [], [], [], []
            self.kind = 'label' if t.endswith(':') else 'dir'
            return
        mn, _, rest = t.partition(' ')
        self.mn = mn
        ops, mods = split_ops(rest)
        self.ops, self.mods = ops, mods
        R = [regs_of(o) for o in ops]
        flat = lambda xs: [r for x in xs for r in x]
        defs, uses = [], []
        if mn.startswith('v_mfma'):
            self.kind = 'mfma'
            defs, uses = R[0], flat(R[1:])
            self.srcc = R[3]
            self.passes = 8 if '32x32' in mn else 4
        elif mn.startswith('buffer_') or mn.startswith('global_'):
            if 'wbl2' in mn or 'inv' in mn:
                self.kind = 'vmst'
            elif 'load' in mn:
                if 'lds' in mods:
                    self.kind = 'vmdma'
                    uses = flat(R) + [('s', 'm0')]
                else:
                    self.kind = 'vmld'
                    defs, uses = R[0], flat(R[1:])
            else:
                self.kind = 'vmst'
                uses = flat(R)
                self.data = R[0] if mn.startswith('buffer_') else R[1]
                self.wide = mn.endswith('x4') or mn.endswith('x3')
        elif mn.startswith('ds_'):
            if mn.startswith('ds_read') or 'permute' in mn or 'swizzle' in mn:
                self.kind = 'dsrd'
                defs, uses = R[0], flat(R[1:])
            else:
                self.kind = 'dswr'
                uses = flat(R)
        elif mn.startswith('s_load') or mn in ('s_memtime', 's_memrealtime'):
            self.kind = 'smem'
            defs, uses = R[0], flat(R[1:])
        elif mn.startswith('s_'):
            self.kind = 'salu'
            if mn.startswith('s_cmp') or mn.startswith('s_cbranch') or mn in (
                    's_branch', 's_waitcnt', 's_nop', 's_barrier', 's_endpgm', 's_setprio', 's_setpc_b64', 's_bitcmp1_b32',
                    's_bitcmp0_b32'):
                uses = flat(R)
                if 'vcc' in mn:
                    uses = uses + [('s', 'vcc')]
            else:
                defs, uses = R[0], flat(R[1:])
                if mn.startswith('s_addk') or mn.startswith('s_mulk'):
                    uses = uses + R[0]
        elif mn.startswith('v_'):
            self.kind = 'valu'
            if 'swap' in mn:
                defs, uses = R[0] + R[1], R[0] + R[1]
            elif '_co_' in mn:
                defs, uses = R[0] + R[1], flat(R[2:])
            else:
                defs, uses = R[0], flat(R[1:])
                if mn.startswith('v_fmac') or mn.startswith('v_dot2c') or self.is_dpp():
                    uses = uses + R[0]
        else:
            raise ValueError('unknown instruction ' + text)
        self.defs, self.uses = defs, uses

    def is_dpp(self):
        return any(m.startswith(('row_', 'quad_perm', 'wave_')) for m in self.mods)

    def is_trans(self):
        return self.mn.replace('_e64', '').replace('_e32', '') in TRANS

    def is_dot(self):
        return self.mn.startswith('v_dot')

    def is_vmem(self):
        return self.kind in ('vmld', 'vmst', 'vmdma')

    def is_lgkm(self):
        return self.kind in ('dsrd', 'dswr', 'smem')

    def states(self):
        if self.kind in ('label', 'dir'):
            return 0
        if self.mn == 's_nop':
            return int(self.ops[0]) + 1
        return 1


class Wait:
    def __init__(self, toks):
        self.toks = toks


class Reset:
    pass


def hazard_need(prev, cur):
    need = 0
    pd, cu, cd = set(prev.defs), set(cur.uses), set(cur.defs)
    vec = lambda s: {r for r in s if r[0] in 'va'}
    sca = lambda s: {r for r in s if r[0] == 's'}
    if prev.kind == 'valu':
        raw = vec(pd) & cu
        if raw:
            if cur.kind == 'mfma':
                need = max(need, 2)
            if cur.kind == 'valu':
                if 'permlane' in cur.mn or cur.is_dpp():
                    need = max(need, 2)
                if cur.mn.startswith(('v_readlane', 'v_readfirstlane')):
                    need = max(need, 1)
                if prev.is_trans() and not cur.is_trans():
                    need = max(need, 1)
        if prev.is_dot() and (vec(pd) & (cu | cd)):
            same_c = cur.mn == prev.mn and cur.defs == prev.defs and not (
                vec(pd) & set(r for o in cur.ops[1:3] for r in regs_of(o)))
            if not same_c:
                need = max(need, 3)
        sraw = sca(pd) & cu
        if sraw:
            if cur.kind == 'valu':
                need = max(need, 4 if cur.mn.startswith(('v_readlane', 'v_writelane')) else 2)
            if cur.is_vmem():
                need = max(need, 5)
    if prev.kind == 'mfma':
        big = {4: 8, 8: 12}[prev.passes]
        if cur.kind == 'mfma':
            ab = set(r for o in cur.ops[1:3] for r in regs_of(o))
            if pd & ab:
                need = max(need, big)
            if pd & set(cur.srcc):
                if not (cur.srcc == prev.defs and cur.passes == prev.passes):
                    need = max(need, big - 2)
            elif pd & cd:
                need = max(need, big - 2)
        elif pd & (cu | cd):
            need = max(need, big)
        if cur.kind == 'valu' and set(prev.srcc) & cd:
            need = max(need, prev.passes - 1)
    if prev.kind == 'salu' and ('s', 'm0') in pd and cur.kind == 'vmdma':
        need = max(need, 1)
    if prev.kind == 'vmst' and prev.wide and set(prev.data) & cd:
        need = max(need, 2)
    return need


class Asm:
    def __init__(self):
        self.items = []
        self.cond = False
        self.nlab = 0

    def __call__(self, text):
        last = None
        for line in text.split('\n'):
            line = line.strip()
            if line:
                last = Ins(line, self.cond)
                self.items.append(last)
        return last

    def add(self, items):
        self.items += items

    def wait(self, *toks):
        flat = []
        for t in toks:
            flat += t if isinstance(t, (list, tuple)) else [t]
        self.items.append(Wait([t for t in flat if t is not None]))

    def reset(self):
        self.items.append(Reset())

    def label(self, base='L'):
        self.nlab += 1
        return f'{base}_{self.nlab}'

    def capture(self, fn):
        saved, self.items = self.items, []
        fn()
        got, self.items = self.items, saved
        return got

    def finalize(self):
        out = []
        vm, lg = [], []

        def emit_wait(nv, nl):
            parts = []
            if nv is not None:
                parts.append(f'vmcnt({nv})')
            if nl is not None:
                parts.append(f'lgkmcnt({nl})')
            if parts:
                out.append(Ins('s_waitcnt ' + ' '.join(parts)))

        def need_for(q, idx, cap):
            after = [o for o in q[idx + 1:] if not o.cond]
            return min(len(after), cap)

        def retire(q, n):
            keep, cnt = [], 0
            for o in reversed(q):
                if cnt >= n:
                    break
                keep.append(o)
                if not o.cond:
                    cnt += 1
            keep.reverse()
            q[:] = keep

        def do_wait(vidx, lidx):
            nv = nl = None
            if vidx is not None:
                nv = need_for(vm, vidx, 63)
            if lidx is not None:
                nl = 0 if any(o.kind == 'smem' for o in lg) else need_for(lg, lidx, 15)
            emit_wait(nv, nl)
            if nv is not None:
                retire(vm, nv)
            if nl is not None:
                retire(lg, nl)

        for it in self.items:
            if isinstance(it, Reset):
                vm.clear()
                lg.clear()
                continue
            if isinstance(it, Wait):
                vi = max((i for i, o in enumerate(vm) if any(o is t for t in it.toks)), default=None)
                li = max((i for i, o in enumerate(lg) if any(o is t for t in it.toks)), default=None)
                do_wait(vi, li)
                continue
            if it.kind in ('label', 'dir'):
                out.append(it)
                continue
            if it.mn == 's_waitcnt':
                m = re.search(r'vmcnt\((\d+)\)', it.text)
                if m and not it.cond:
                    retire(vm, int(m.group(1)))
                m = re.search(r'lgkmcnt\((\d+)\)', it.text)
                if m and not it.cond:
                    n = int(m.group(1))
                    if n == 0 or not any(o.kind == 'smem' for o in lg):
                        retire(lg, n)
                out.append(it)
                continue
            touched = set(it.uses) | set(it.defs)
            usev = set(it.uses) if it.kind == 'vmld' else touched
            usel = set(it.uses) if it.kind == 'dsrd' else touched
            vi = max((i for i, o in enumerate(vm) if usev & set(o.defs)), default=None)
            li = max((i for i, o in enumerate(lg) if (touched if o.kind == 'smem' else usel) & set(o.defs)), default=None)
            if vi is not None or li is not None:
                assert not it.cond, 'automatic wait inside a conditional region: ' + it.text
                do_wait(vi, li)
            dist, need = 0, 0
            for prev in reversed(out):
                if prev.kind in ('label', 'dir'):
                    continue
                need = max(need, hazard_need(prev, it) - dist)
                if not (prev.cond and not it.cond):
                    dist += prev.states()
                if dist >= 14:
                    break
            if need > 0:
                out.append(Ins(f's_nop {need - 1}', it.cond))
            out.append(it)
            if it.is_vmem():
                vm.append(it)
            if it.is_lgkm():
                lg.append(it)
        return out


def interleave(main, fill, start=0, end=None):
    end = len(main) if end is None else end
    n = end - start
    out, k = list(main[:start]), 0
    for i in range(n):
        out.append(main[start + i])
        want = (i + 1) * len(fill) // n
        while k < want:
            out.append(fill[k])
            k += 1
    out += main[end:]
    return out


class Regs:
    def __init__(self, lo, hi):
        self.free = set(range(lo, hi))
        self.peak = lo

    def get(self, n=1, align=None):
        align = align or (2 if n > 1 else 1)
        for b in sorted(self.free):
            if b % align == 0 and all(b + i in self.free for i in range(n)):
                for i in range(n):
                    self.free.remove(b + i)
                self.peak = max(self.peak, b + n)
                return b
        raise RuntimeError(f'out of registers ({n})')

    def put(self, b, n=1):
        for i in range(n):
            assert b + i not in self.free
            self.free.add(b + i)


def v(b, n=1):
    return f'v{b}' if n == 1 else f'v[{b}:{b + n - 1}]'


def a(b, n=1):
    return f'a{b}' if n == 1 else f'a[{b}:{b + n - 1}]'


def s(b, n=1):
    return f's{b}' if n == 1 else f's[{b}:{b + n - 1}]'
```

```python
import math
import struct
import sys

from asmlib import Asm, Regs, interleave, v, a, s

NAME = 'interleave_layers__spectral_fnet__mixer_gmlp__prompt_kernel'

NONCE = 0x0
FT = [0x10000, 0x18000]
FZ = [0x20000, 0x28000]
FH = [0x40000, 0x60000]
FX = 0x80000
FPI = 0xA0000
FPO = 0xA2000
FSP = 0xA8000
ST = [0x100000, 0x140000]
WIN = 0x200000
WOUT = 0x400000
WSP = 0x600000
TT = [0xE00000, 0x1000000]
X1 = [0x1200000, 0x1400000]
X2 = 0x1600000
Z2 = [0x1800000, 0x1C00000]
HH = [0x2000000, 0x2400000]
DIAG = 0x2800000
WS_BYTES = 0x2900000

SLOT = 14336
L_W = 0
L_T = 7 * SLOT
L_WO = 3 * SLOT
L_EX = 4 * SLOT
L_BN = L_EX + 8192
L_RED = 0
LDS_BYTES = 163840

sX, sF, sFI, sWI, sWSP, sB, sWO, sOUT, sWS = 4, 8, 12, 16, 20, 24, 28, 32, 36
sRB, sCT, sW, sG, sNON, sFF0, sFF6, sBUD = 40, 41, 42, 43, 44, 45, 46, 47
sGA, sGB, sHALF, sGSEL, sRW = 48, 49, 50, 51, 52
sEPS, sONE2, sPLO, sPHI = 53, 54, 55, 56
sC1, sC2 = 58, 60
sM1, sM2, sQ0 = 62, 64, 66
sT = [70 + i for i in range(12)]
sSTAMP = 90


def f2u(x):
    return struct.unpack('<I', struct.pack('<f', x))[0]


class Gen:
    def __init__(self, stop=None, diag=False):
        self.k = Asm()
        self.V = Regs(1, 256)
        self.stop = stop
        self.diag = diag
        self.nstamp = 0
        self.stamps = []

    def stamp(self, name):
        if not self.diag:
            return
        k = self.k
        k(f's_memrealtime {s(sSTAMP, 2)}')
        k('s_waitcnt lgkmcnt(0)')
        k(f'v_writelane_b32 {v(self.vST)}, {s(sSTAMP)}, {self.nstamp}')
        self.stamps.append(name)
        self.nstamp += 1

    def sadd(self, d, base, imm):
        self.k(f's_add_u32 {s(d)}, {s(base)}, {imm}')

    def lds_base(self, addr):
        return self.vL16[addr >> 16], addr & 0xffff

    def poll(self, voff, soff, nlanes):
        k = self.k
        p = self.V.get()
        lp, ld = k.label('poll'), k.label('go')
        k(f's_bfm_b64 exec, {nlanes}, 0')
        k(f'{lp}:')
        k(f'buffer_load_dword {v(p)}, {v(voff)}, {s(sWS, 4)}, {s(soff)} offen sc1')
        k('s_waitcnt vmcnt(0)')
        k(f'v_cmp_ne_u32 vcc, {s(sNON)}, {v(p)}')
        k(f's_cbranch_vccz {ld}')
        k(f's_sub_u32 {s(sBUD)}, {s(sBUD)}, 1')
        k(f's_cbranch_scc0 {lp}')
        k(f's_mov_b32 {s(sBUD)}, 0')
        k(f'{ld}:')
        k('s_mov_b64 exec, -1')
        self.V.put(p)

    def flag(self, soff, wave0):
        k = self.k
        if wave0:
            lb = k.label('nf')
            k(f's_cmp_lg_u32 {s(sW)}, 0')
            k(f's_cbranch_scc1 {lb}')
            k.cond = True
        k('s_mov_b64 exec, 1')
        t = k(f'buffer_store_dword {v(self.vNON)}, {v(self.vL16[0])}, {s(sWS, 4)}, {s(soff)} offen sc1')
        k('s_mov_b64 exec, -1')
        if wave0:
            k.cond = False
            k(f'{lb}:')
        return t

    def dma_linear(self, ssrc, sdst, n, flags='sc1', src_imm=0, dst_imm=0):
        k, toks = self.k, []
        for i in range(n):
            if i % 4 == 0:
                k(f's_add_u32 {s(sT[11])}, {s(ssrc)}, {src_imm + 1024 * i}')
                k(f's_add_u32 m0, {s(sdst)}, {dst_imm + 1024 * i}')
            toks.append(k(f'buffer_load_dwordx4 {v(self.vL16[0])}, {s(sWS, 4)}, {s(sT[11])} offen offset:{1024 * (i % 4)} {flags} lds'))
        return toks

    def dma_rows(self, srd, voffs, soff, sdst):
        k, toks = self.k, []
        so = s(soff) if soff is not None else '0'
        for lc in range(7):
            for rh in range(2):
                k(f's_add_u32 m0, {s(sdst)}, {(rh * 7 + lc) * 1024 - 128 * lc}')
                toks.append(k(f'buffer_load_dwordx4 {v(voffs[rh])}, {s(srd, 4)}, {so} offen offset:{128 * lc} lds'))
        return toks

    def xrow_offsets(self):
        k, V = self.k, self.V
        o0, o1 = V.get(), V.get()
        k(f'v_lshrrev_b32 {v(o1)}, 3, {v(self.vLane)}')
        k(f'v_mul_u32_u24 {v(o1)}, 0xe000, {v(o1)}')
        k(f'v_lshl_add_u32 {v(o0)}, {v(self.vPc)}, 4, {v(o1)}')
        k(f'v_xor_b32 {v(o1)}, 64, {v(o0)}')
        k(f'v_add_u32 {v(o1)}, {8 * 57344}, {v(o1)}')
        return [o0, o1]

    def butterfly(self, regs):
        k, V = self.k, self.V
        ts = [V.get() for _ in regs]
        for op in ('v_permlane32_swap_b32', 'v_permlane16_swap_b32'):
            for r, t in zip(regs, ts):
                k(f'v_mov_b32 {v(t)}, {v(r)}')
            for r, t in zip(regs, ts):
                k(f'{op} {v(r)}, {v(t)}')
            for r, t in zip(regs, ts):
                k(f'v_add_f32 {v(r)}, {v(r)}, {v(t)}')
        for t in ts:
            V.put(t)

    def ln_coef(self, ssum, ssq, n, r, c):
        k = self.k
        k(f'v_mul_f32 {v(ssum)}, {hex(f2u(1.0 / n))}, {v(ssum)}')
        k(f'v_mul_f32 {v(ssq)}, {hex(f2u(1.0 / n))}, {v(ssq)}')
        k(f'v_fma_f32 {v(ssq)}, -{v(ssum)}, {v(ssum)}, {v(ssq)}')
        k(f'v_max_f32 {v(ssq)}, 0, {v(ssq)}')
        k(f'v_add_f32 {v(ssq)}, {s(sEPS)}, {v(ssq)}')
        k(f'v_rsq_f32 {v(r)}, {v(ssq)}')
        if c is not None:
            k(f'v_mul_f32_e64 {v(c)}, -{v(ssum)}, {v(r)}')

    def gelu(self, base, n):
        k, V = self.k, self.V
        nb = 4
        t = V.get(2 * nb)
        pairs = list(range(0, n, 2))
        for b0 in range(0, len(pairs), nb):
            grp = list(enumerate(pairs[b0:b0 + nb]))
            for i, p in grp:
                k(f'v_pk_mul_f32 {v(t + 2 * i, 2)}, {v(base + p, 2)}, {v(base + p, 2)}')
            for i, p in grp:
                k(f'v_pk_fma_f32 {v(t + 2 * i, 2)}, {v(t + 2 * i, 2)}, {s(sC2, 2)}, {v(self.vC1, 2)}')
            for i, p in grp:
                k(f'v_pk_mul_f32 {v(t + 2 * i, 2)}, {v(t + 2 * i, 2)}, {v(base + p, 2)}')
            for i, p in grp:
                k(f'v_exp_f32 {v(t + 2 * i)}, {v(t + 2 * i)}')
                k(f'v_exp_f32 {v(t + 2 * i + 1)}, {v(t + 2 * i + 1)}')
            for i, p in grp:
                k(f'v_pk_add_f32 {v(t + 2 * i, 2)}, {v(t + 2 * i, 2)}, 1.0 op_sel_hi:[1,0]')
            for i, p in grp:
                k(f'v_rcp_f32 {v(t + 2 * i)}, {v(t + 2 * i)}')
                k(f'v_rcp_f32 {v(t + 2 * i + 1)}, {v(t + 2 * i + 1)}')
            for i, p in grp:
                k(f'v_pk_mul_f32 {v(base + p, 2)}, {v(base + p, 2)}, {v(t + 2 * i, 2)}')
        V.put(t, 2 * nb)

    def transpose8(self, src, j, dst):
        sel = sPHI if j & 1 else sPLO
        for r in range(4):
            self.k(f'v_perm_b32 {v(dst + r)}, {v(src + 4 * (2 * r + 1) + (j >> 1))}, {v(src + 4 * (2 * r) + (j >> 1))}, {s(sel)}')

    def mfma(self, d, A, B, c):
        return self.k(f'v_mfma_f32_16x16x32_bf16 {v(d, 4)}, {A}, {B}, {c}')

    def lds_stream(self, addrs, consume, depth=6, rd=None):
        k, V = self.k, self.V
        buf = V.get(4 * depth)
        if rd is None:
            def rd(reg, ad):
                k(f'ds_read_b128 {v(reg, 4)}, {v(ad[0])} offset:{ad[1]}')
        n = len(addrs)
        for i in range(min(depth - 1, n)):
            rd(buf + 4 * i, addrs[i])
        for i in range(n):
            if i + depth - 1 < n:
                rd(buf + 4 * ((i + depth - 1) % depth), addrs[i + depth - 1])
            consume(i, buf + 4 * (i % depth))
        V.put(buf, 4 * depth)

    def prologue(self):
        k, V = self.k, self.V
        k(f's_cmp_ge_u32 s2, 256')
        k('s_cbranch_scc1 L_end')
        for reg, off in ((sX, 0), (sF, 24), (sFI, 32), (sWS, 96), (sWSP, 56), (sWI, 48), (sB, 64), (sWO, 72), (sOUT, 80)):
            k(f's_load_dwordx2 {s(reg, 2)}, s[0:1], {off}')
        j0, j1 = V.get(), V.get()
        k(f's_getpc_b64 {s(sT[0], 2)}')
        k('L_pc:')
        k(f'v_lshlrev_b32 {v(j0)}, 7, v0')
        k(f'v_add_u32 {v(j1)}, 0x8000, {v(j0)}')
        k(f'v_min_u32 {v(j0)}, L_end-L_pc, {v(j0)}')
        k(f'v_min_u32 {v(j1)}, L_end-L_pc, {v(j1)}')
        k(f'global_load_dword {v(j0)}, {v(j0)}, {s(sT[0], 2)}')
        k(f'global_load_dword {v(j1)}, {v(j1)}, {s(sT[0], 2)}')
        self.vJ = (j0, j1)
        self.vLane, self.vN, self.vQ, self.vPc = V.get(), V.get(), V.get(), V.get()
        self.vL16 = [V.get(), V.get(), V.get()]
        self.vL128, self.vNON, self.vBias = V.get(), V.get(), V.get()
        self.vC1 = V.get(2)
        if self.diag:
            self.vST = V.get()
            k(f'v_mov_b32 {v(self.vST)}, 0')
        k(f'v_lshrrev_b32 {v(self.vQ)}, 6, v0')
        k(f'v_and_b32 {v(self.vLane)}, 63, v0')
        k(f'v_readfirstlane_b32 {s(sW)}, {v(self.vQ)}')
        k(f'v_and_b32 {v(self.vN)}, 15, v0')
        k(f'v_lshrrev_b32 {v(self.vQ)}, 4, {v(self.vLane)}')
        k(f'v_and_b32 {v(self.vPc)}, 7, v0')
        k(f'v_xor_b32 {v(self.vPc)}, {v(self.vPc)}, {v(self.vQ)}')
        k(f'v_lshlrev_b32 {v(self.vL16[0])}, 4, {v(self.vLane)}')
        t0, t1, t2 = sT[2], sT[3], sT[4]
        k(f's_lshr_b32 {s(t0)}, s2, 3')
        k(f's_and_b32 {s(sCT)}, {s(t0)}, 7')
        k(f's_and_b32 {s(t1)}, s2, 7')
        k(f's_lshl_b32 {s(t1)}, {s(t1)}, 1')
        k(f's_lshr_b32 {s(t2)}, s2, 7')
        k(f's_add_u32 {s(t1)}, {s(t1)}, {s(t2)}')
        k(f's_sub_u32 {s(t2)}, 32, {s(t1)}')
        k(f's_cmp_eq_u32 {s(t1)}, 0')
        k(f's_cselect_b32 {s(t2)}, 16, {s(t2)}')
        k(f's_bitcmp1_b32 s2, 6')
        k(f's_cselect_b32 {s(sRB)}, {s(t2)}, {s(t1)}')
        k(f's_and_b32 {s(sHALF)}, {s(sW)}, 1')
        k(f's_lshr_b32 {s(sGSEL)}, {s(sW)}, 1')
        for reg, nbytes in ((sX, 1835008), (sF, 401408), (sWS, WS_BYTES), (sWSP, 8388608), (sWI, 1605632), (sB, 4096),
                            (sWO, 802816), (sOUT, 1835008)):
            k(f's_mov_b32 {s(reg + 2)}, {nbytes}')
            k(f's_mov_b32 {s(reg + 3)}, 0x20000')
        k(f's_mov_b32 {s(sGA)}, {s(sRB)}')
        k(f's_sub_u32 {s(sGB)}, 64, {s(sRB)}')
        k(f's_cmp_eq_u32 {s(sRB)}, 0')
        k(f's_cselect_b32 {s(sGB)}, 32, {s(sGB)}')
        k('s_waitcnt lgkmcnt(0)')
        k(f's_cmp_eq_u32 {s(sGSEL)}, 0')
        k(f's_cselect_b32 {s(sG)}, {s(sGA)}, {s(sGB)}')
        k(f's_cselect_b64 {s(sF, 2)}, {s(sF, 2)}, {s(sFI, 2)}')
        self.stamp('start')

    def consts(self):
        k, V = self.k, self.V
        k(f'v_add_u32 {v(self.vL16[1])}, 0x10000, {v(self.vL16[0])}')
        k(f'v_add_u32 {v(self.vL16[2])}, 0x20000, {v(self.vL16[0])}')
        k(f'v_lshlrev_b32 {v(self.vL128)}, 7, {v(self.vLane)}')
        c1 = -2.0 * math.sqrt(2.0 / math.pi) * math.log2(math.e)
        k(f'v_mov_b32 {v(self.vC1)}, {hex(f2u(c1))}')
        k(f'v_mov_b32 {v(self.vC1 + 1)}, {hex(f2u(c1))}')
        k(f's_mov_b32 {s(sC2)}, {hex(f2u(c1 * 0.044715))}')
        k(f's_mov_b32 {s(sC2 + 1)}, {hex(f2u(c1 * 0.044715))}')
        k(f's_mov_b32 {s(sEPS)}, {hex(f2u(1e-5))}')
        k(f's_mov_b32 {s(sONE2)}, 0x3f803f80')
        k(f's_mov_b32 {s(sPLO)}, 0x05040100')
        k(f's_mov_b32 {s(sPHI)}, 0x07060302')
        k(f's_mov_b32 {s(sBUD)}, 200000')
        for r, val in ((sM1, 0xaaaaaaaa), (sM2, 0xcccccccc)):
            k(f's_mov_b32 {s(r)}, {hex(val)}')
            k(f's_mov_b32 {s(r + 1)}, {hex(val)}')
        k(f's_mov_b64 {s(sQ0, 2)}, 0xffff')
        k(f's_lshl_b32 {s(sRW)}, {s(sRB)}, 2')
        k(f's_add_u32 {s(sRW)}, {s(sRW)}, {s(sW)}')
        k(f's_mul_i32 {s(sFF6)}, {s(sCT)}, 7')
        k(f's_and_b32 {s(sT[0])}, {s(sCT)}, 1')
        k(f's_add_u32 {s(sFF0)}, {s(sFF6)}, {s(sT[0])}')
        k(f's_cmp_eq_u32 {s(sT[0])}, 0')
        k(f's_cselect_b32 {s(sT[0])}, 6, 0')
        k(f's_add_u32 {s(sFF6)}, {s(sFF6)}, {s(sT[0])}')

    def small_loads(self):
        k, V = self.k, self.V
        t = V.get()
        k(f'buffer_load_dword {v(self.vNON)}, off, {s(sWS, 4)}, 0 offset:{NONCE} sc1')
        k(f's_lshl_b32 {s(sT[0])}, {s(sHALF)}, 10')
        k(f's_add_u32 {s(sT[0])}, {s(sT[0])}, {s(sG)}')
        k(f's_lshl_b32 {s(sT[0])}, {s(sT[0])}, 1')
        k(f'v_lshlrev_b32 {v(t)}, 7, {v(self.vN)}')
        k(f'buffer_load_ushort {v(self.vBias)}, {v(t)}, {s(sB, 4)}, {s(sT[0])} offen')
        V.put(t)

    def small_finish(self):
        k = self.k
        k(f'v_readfirstlane_b32 {s(sNON)}, {v(self.vNON)}')
        k(f'v_lshlrev_b32 {v(self.vBias)}, 16, {v(self.vBias)}')
        k(f's_mul_i32 {s(sNON)}, {s(sNON)}, 1664525')
        k(f's_add_u32 {s(sNON)}, {s(sNON)}, 1013904223')
        k(f'v_mov_b32 {v(self.vNON)}, {s(sNON)}')

    def wsp_load(self):
        k, V = self.k, self.V
        raw = V.get(32)
        o = V.get()
        t0, t1 = sT[0], sT[1]
        k(f's_bitcmp1_b32 {s(sCT)}, 1')
        k(f's_cselect_b32 {s(t0)}, {s(sGB)}, {s(sGA)}')
        k(f's_and_b32 {s(t1)}, {s(sCT)}, 1')
        k(f's_lshl_b32 {s(t1)}, {s(t1)}, 10')
        k(f's_add_u32 {s(t0)}, {s(t0)}, {s(t1)}')
        k(f's_lshl_b32 {s(t0)}, {s(t0)}, 12')
        k(f's_lshl_b32 {s(t1)}, {s(sW)}, 10')
        k(f's_add_u32 {s(t0)}, {s(t0)}, {s(t1)}')
        k(f's_lshr_b32 {s(t1)}, {s(sCT)}, 2')
        k(f's_lshl_b32 {s(t1)}, {s(t1)}, 6')
        k(f's_add_u32 {s(t0)}, {s(t0)}, {s(t1)}')
        k(f'v_lshlrev_b32 {v(o)}, 18, {v(self.vN)}')
        k(f'v_lshl_add_u32 {v(o)}, {v(self.vQ)}, 4, {v(o)}')
        for i in range(8):
            k(f'buffer_load_dwordx4 {v(raw + 4 * i, 4)}, {v(o)}, {s(sWSP, 4)}, {s(t0)} offen offset:{128 * i}')
        V.put(o)
        return raw

    def wsp_store(self, raw):
        k, V = self.k, self.V
        t0, t1, sg = sT[0], sT[1], sT[2]
        k(f's_lshl_b32 {s(t0)}, {s(sRB)}, 18')
        k(f's_lshr_b32 {s(sg)}, {s(sCT)}, 2')
        k(f's_lshl_b32 {s(t1)}, {s(sCT)}, 10')
        k(f's_add_u32 {s(t0)}, {s(t0)}, {s(t1)}')
        k(f's_lshl_b32 {s(t1)}, {s(sW)}, 8')
        k(f's_add_u32 {s(t0)}, {s(t0)}, {s(t1)}')
        k(f's_add_u32 {s(t0)}, {s(t0)}, {WSP}')
        k(f's_lshl_b32 {s(sg)}, {s(sg)}, 1')
        k(f's_sub_u32 {s(sg)}, 1, {s(sg)}')
        y, n16, o = V.get(), V.get(), V.get()
        out = V.get(8)
        k(f'v_lshlrev_b32 {v(y)}, 3, {v(self.vQ)}')
        k(f'v_mul_i32_i24 {v(y)}, {s(sg)}, {v(y)}')
        k(f'v_lshlrev_b32 {v(n16)}, 4, {v(self.vN)}')
        toks = []
        for j in range(8):
            d = out + 4 * (j & 1)
            k(f'v_and_b32 {v(o)}, 31, {v(y)}')
            k(f'v_lshl_add_u32 {v(o)}, {v(o)}, 13, {v(n16)}')
            self.transpose8(raw, j, d)
            toks.append(k(f'buffer_store_dwordx4 {v(d, 4)}, {v(o)}, {s(sWS, 4)}, {s(t0)} offen sc1'))
            k(f'v_add_u32 {v(y)}, {s(sg)}, {v(y)}')
        for r in (y, n16, o):
            V.put(r)
        V.put(out, 8)
        V.put(raw, 32)
        return toks

    def div14(self, u, q, r):
        k = self.k
        k(f's_mul_i32 {s(q)}, {s(u)}, 147')
        k(f's_lshr_b32 {s(q)}, {s(q)}, 11')
        k(f's_mul_i32 {s(r)}, {s(q)}, 14')
        k(f's_sub_u32 {s(r)}, {s(u)}, {s(r)}')

    def helper(self):
        k, V = self.k, self.V
        self.consts()
        self.small_loads()
        u, tl, jj, c0, c1, so = sT[0], sT[1], sT[2], sT[3], sT[4], sT[5]
        dst = [sT[6], sT[7], sT[8]]
        raws = []
        o = V.get()
        for un in range(2):
            raw = V.get(32)
            raws.append(raw)
            k(f's_add_u32 {s(u)}, {s(sRW)}, {128 * un}')
            k(f's_min_u32 {s(u)}, {s(u)}, 195')
            self.div14(u, tl, jj)
            k(f's_add_u32 {s(c1)}, {s(jj)}, 42')
            k(f's_cmp_lt_u32 {s(jj)}, 7')
            k(f's_cselect_b32 {s(c0)}, 7, -7')
            k(f's_cselect_b32 {s(c1)}, {s(jj)}, {s(c1)}')
            k(f'v_mul_i32_i24 {v(o)}, {s(c0)}, {v(self.vQ)}')
            k(f'v_add_u32 {v(o)}, {s(c1)}, {v(o)}')
            k(f'v_mul_u32_u24 {v(o)}, 28672, {v(o)}')
            k(f'v_lshl_add_u32 {v(o)}, {v(self.vN)}, 4, {v(o)}')
            k(f's_lshl_b32 {s(so)}, {s(tl)}, 8')
            for i in range(8):
                k(f'buffer_load_dwordx4 {v(raw + 4 * i, 4)}, {v(o)}, {s(sWI, 4)}, {s(so)} offen')
                k(f's_add_u32 {s(so)}, {s(so)}, 3584')
            k(f's_mul_i32 {s(dst[un])}, {s(tl)}, 114688')
            k(f's_lshl_b32 {s(jj)}, {s(jj)}, 10')
            k(f's_add_u32 {s(dst[un])}, {s(dst[un])}, {s(jj)}')
            k(f's_add_u32 {s(dst[un])}, {s(dst[un])}, {WIN}')
        rawsp = self.wsp_load()
        rawo = V.get(32)
        t, wa = V.get(), V.get()
        k(f's_min_u32 {s(u)}, {s(sRW)}, 97')
        self.div14(u, tl, jj)
        k(f's_lshr_b32 {s(c0)}, {s(jj)}, 1')
        k(f's_lshl_b32 {s(c0)}, {s(c0)}, 7')
        k(f's_and_b32 {s(c1)}, {s(jj)}, 1')
        k(f's_lshl_b32 {s(c1)}, {s(c1)}, 2')
        k(f's_add_u32 {s(c0)}, {s(c0)}, {s(c1)}')
        k(f's_mul_i32 {s(c0)}, {s(c0)}, 896')
        k(f's_lshl_b32 {s(c1)}, {s(tl)}, 7')
        k(f's_add_u32 {s(c0)}, {s(c0)}, {s(c1)}')
        k(f'v_bfe_u32 {v(t)}, {v(self.vLane)}, 3, 2')
        k(f'v_lshrrev_b32 {v(wa)}, 5, {v(self.vLane)}')
        k(f'v_lshl_add_u32 {v(o)}, {v(t)}, 4, {v(wa)}')
        k(f'v_mul_u32_u24 {v(o)}, 1792, {v(o)}')
        k(f'v_lshlrev_b32 {v(wa)}, 12, {v(wa)}')
        k(f'v_lshl_add_u32 {v(wa)}, {v(t)}, 8, {v(wa)}')
        k(f'v_and_b32 {v(t)}, 7, {v(self.vLane)}')
        k(f'v_lshl_add_u32 {v(o)}, {v(t)}, 4, {v(o)}')
        k(f'v_bfe_u32 {v(t)}, {v(self.vLane)}, 2, 1')
        k(f'v_lshl_add_u32 {v(wa)}, {v(t)}, 11, {v(wa)}')
        k(f'v_and_b32 {v(t)}, 3, {v(self.vLane)}')
        k(f'v_lshl_add_u32 {v(wa)}, {v(t)}, 6, {v(wa)}')
        k(f's_lshl_b32 {s(c1)}, {s(sW)}, 13')
        k(f'v_add_u32 {v(wa)}, {s(c1)}, {v(wa)}')
        k(f'v_add_u32 {v(t)}, {s(c1)}, {v(self.vL16[0])}')
        for i in range(8):
            k(f's_add_u32 {s(so)}, {s(c0)}, {(8 * (i & 3) + (i >> 2)) * 896}')
            k(f'buffer_load_dwordx4 {v(rawo + 4 * i, 4)}, {v(o)}, {s(sWO, 4)}, {s(so)} offen')
        k(f's_mul_i32 {s(dst[2])}, {s(tl)}, 114688')
        k(f's_lshl_b32 {s(jj)}, {s(jj)}, 13')
        k(f's_add_u32 {s(dst[2])}, {s(dst[2])}, {s(jj)}')
        k(f's_add_u32 {s(dst[2])}, {s(dst[2])}, {WOUT}')
        self.small_finish()
        out = V.get(8)
        toks = []
        for un in range(2):
            for j in range(8):
                d = out + 4 * (j & 1)
                self.transpose8(raws[un], j, d)
                toks.append(k(f'buffer_store_dwordx4 {v(d, 4)}, {v(self.vL16[0])}, {s(sWS, 4)}, {s(dst[un])} offen sc1'))
                k(f's_add_u32 {s(dst[un])}, {s(dst[un])}, {SLOT}')
            V.put(raws[un], 32)
        wr = []
        for j in range(8):
            d = out + 4 * (j & 1)
            self.transpose8(rawo, j, d)
            wr.append(k(f'ds_write_b128 {v(wa)}, {v(d, 4)} offset:{(j >> 2) * 1024 + (j & 3) * 16}'))
        k.wait(toks)
        k('s_barrier')
        k(f's_lshl_b32 {s(so)}, {s(sRB)}, 7')
        k(f's_add_u32 {s(so)}, {s(so)}, {FPI}')
        self.flag(so, True)
        for j in range(8):
            k(f'ds_read_b128 {v(rawo + 4 * j, 4)}, {v(t)} offset:{1024 * j}')
        V.put(out, 8)
        toks = self.wsp_store(rawsp)
        for j in range(8):
            if j == 4:
                k(f's_add_u32 {s(dst[2])}, {s(dst[2])}, 4096')
            toks.append(k(f'buffer_store_dwordx4 {v(rawo + 4 * j, 4)}, {v(self.vL16[0])}, {s(sWS, 4)}, {s(dst[2])} offen offset:{1024 * (j & 3)} sc1'))
        k('s_waitcnt vmcnt(0) lgkmcnt(0)')
        k('s_barrier')
        k(f's_add_u32 {s(so)}, {s(so)}, {FPO - FPI}')
        self.flag(so, True)
        self.fsp_flag()
        V.put(rawo, 32)
        for r in (o, t, wa):
            V.put(r)

    def fsp_flag(self):
        k = self.k
        k(f's_lshl_b32 {s(sT[0])}, {s(sRB)}, 3')
        k(f's_add_u32 {s(sT[0])}, {s(sT[0])}, {s(sCT)}')
        k(f's_lshl_b32 {s(sT[0])}, {s(sT[0])}, 7')
        k(f's_add_u32 {s(sT[0])}, {s(sT[0])}, {FSP}')
        self.flag(sT[0], True)

    def table_m1(self):
        k, V = self.k, self.V
        t2, base, st, t = V.get(), V.get(), V.get(), V.get(4)
        k(f's_lshl_b32 {s(sT[0])}, {s(sW)}, 4')
        k(f'v_add_u32 {v(t2)}, {s(sT[0])}, {v(self.vN)}')
        k(f'v_lshl_add_u32 {v(base)}, {v(self.vQ)}, 8, {s(sRB)}')
        k(f'v_mul_u32_u24 {v(base)}, {v(t2)}, {v(base)}')
        k(f'v_lshlrev_b32 {v(st)}, 5, {v(t2)}')
        for ks in range(2):
            for rho in range(4):
                for e in range(2):
                    i = 2 * rho + e
                    k(f'v_mad_u32_u24 {v(t + e)}, {v(st)}, {2 * ((i & 3) + 16 * (i >> 2)) + ks}, {v(base)}')
                for e in range(2):
                    k(f'v_and_b32 {v(t + e)}, 0x7ff, {v(t + e)}')
                for e in range(2):
                    k(f'v_cvt_f32_u32 {v(t + e)}, {v(t + e)}')
                for e in range(2):
                    k(f'v_mul_f32 {v(t + e)}, {hex(f2u(1 / 2048))}, {v(t + e)}')
                for e in range(2):
                    k(f'v_cos_f32 {v(t + 2 + e)}, {v(t + e)}')
                for e in range(2):
                    k(f'v_sin_f32 {v(t + e)}, {v(t + e)}')
                k(f'v_cvt_pk_bf16_f32 {v(self.vM1 + 4 * ks + rho)}, {v(t + 2)}, {v(t + 3)}')
                k(f'v_cvt_pk_bf16_f32 {v(self.vM1 + 8 + 4 * ks + rho)}, {v(t)}, {v(t + 1)}')
                k(f'v_cvt_pk_bf16_f32 {v(self.vM1 + 16 + 4 * ks + rho)}, -{v(t)}, -{v(t + 1)}')
        for r in (t2, base, st):
            V.put(r)
        V.put(t, 4)

    def table_m2(self):
        k, V = self.k, self.V
        t1, sb, base, t = V.get(), V.get(), V.get(), V.get(4)
        k(f's_lshl_b32 {s(sT[0])}, {s(sHALF)}, 4')
        k(f'v_add_u32 {v(t1)}, {s(sT[0])}, {v(self.vN)}')
        k(f'v_lshrrev_b32 {v(sb)}, 1, {v(self.vQ)}')
        k(f'v_lshlrev_b32 {v(sb)}, 2, {v(sb)}')
        k(f'v_and_or_b32 {v(sb)}, {v(self.vQ)}, 1, {v(sb)}')
        k(f'v_lshlrev_b32 {v(sb)}, 1, {v(sb)}')
        k(f's_cmp_eq_u32 {s(sG)}, 0')
        k(f's_cselect_b32 {s(sT[0])}, 32, 31')
        for dr in range(2):
            if dr:
                k(f'v_sub_u32 {v(t1)}, {s(sT[0])}, {v(t1)}')
            k(f'v_mul_u32_u24 {v(base)}, {v(t1)}, {v(sb)}')
            for ks in range(2):
                for r2 in range(2):
                    for e in range(2):
                        k(f'v_mad_u32_u24 {v(t + e)}, {v(t1)}, {16 * ks + 4 * r2 + e}, {v(base)}')
                    for e in range(2):
                        k(f'v_and_b32 {v(t + e)}, 31, {v(t + e)}')
                    for e in range(2):
                        k(f'v_cvt_f32_u32 {v(t + e)}, {v(t + e)}')
                    for e in range(2):
                        k(f'v_mul_f32 {v(t + e)}, {hex(f2u(1 / 32))}, {v(t + e)}')
                    for e in range(2):
                        k(f'v_cos_f32 {v(t + 2 + e)}, {v(t + e)}')
                    for e in range(2):
                        k(f'v_sin_f32 {v(t + e)}, {v(t + e)}')
                    for e in range(2):
                        k(f'v_cvt_pk_bf16_f32 {v(self.vM2 + 8 * dr + 4 * ks + 2 * r2 + e)}, {v(t + 2 + e)}, {v(t + e)}')
        for r in (t1, sb, base):
            V.put(r)
        V.put(t, 4)

    def f_dma(self):
        k, V = self.k, self.V
        e0, e1, t = V.get(), V.get(), V.get()
        t0 = sT[0]
        k(f's_lshr_b32 {s(t0)}, {s(sRB)}, 1')
        k(f's_xor_b32 {s(t0)}, {s(t0)}, {s(sW)}')
        k(f's_and_b32 {s(t0)}, {s(t0)}, 1')
        k(f's_lshl_b32 {s(sT[1])}, {s(sCT)}, 1')
        k(f's_add_u32 {s(t0)}, {s(t0)}, {s(sT[1])}')
        k(f's_lshl_b32 {s(t0)}, {s(t0)}, 2')
        k(f'v_lshrrev_b32 {v(e0)}, 5, {v(self.vLane)}')
        k(f'v_bfe_u32 {v(t)}, {v(self.vLane)}, 3, 2')
        k(f'v_mad_u32_u24 {v(e0)}, {v(e0)}, 56, {v(t)}')
        k(f'v_add_u32 {v(e0)}, {s(t0)}, {v(e0)}')
        k(f'v_add_u32 {v(e1)}, 112, {v(e0)}')
        k(f'v_cmp_eq_u32 vcc, 0, {v(e0)}')
        k(f'v_mov_b32 {v(t)}, 224')
        k(f'v_mul_u32_u24 {v(e1)}, 896, {v(e1)}')
        k(f'v_cndmask_b32 {v(e0)}, {v(e0)}, {v(t)}, vcc')
        k(f'v_mul_u32_u24 {v(e0)}, 896, {v(e0)}')
        k(f'v_lshl_add_u32 {v(e0)}, {v(self.vPc)}, 4, {v(e0)}')
        k(f'v_lshl_add_u32 {v(e1)}, {v(self.vPc)}, 4, {v(e1)}')
        k(f'v_xor_b32 {v(e1)}, 64, {v(e1)}')
        k(f's_mul_i32 {s(t0)}, {s(sW)}, {SLOT}')
        k(f's_add_u32 {s(t0)}, {s(t0)}, {L_T}')
        toks = self.dma_rows(sF, [e0, e1], None, t0)
        for r in (e0, e1, t):
            V.put(r)
        return toks

    def frag_rel(self):
        k, V = self.k, self.V
        r, t = V.get(), V.get()
        k(f'v_lshrrev_b32 {v(r)}, 3, {v(self.vN)}')
        k(f'v_mul_u32_u24 {v(r)}, 7168, {v(r)}')
        k(f'v_and_b32 {v(t)}, 7, {v(self.vN)}')
        k(f'v_lshl_add_u32 {v(r)}, {v(t)}, 7, {v(r)}')
        k(f'v_lshrrev_b32 {v(t)}, 1, {v(self.vN)}')
        k(f'v_xor_b32 {v(t)}, {v(t)}, {v(self.vQ)}')
        k(f'v_lshl_add_u32 {v(r)}, {v(t)}, 4, {v(r)}')
        V.put(t)
        return r

    def r1(self, L, xf, ftoks, rel):
        k, V = self.k, self.V
        st = V.get(4)
        for i in range(4):
            k(f'v_mov_b32 {v(st + i)}, 0')
        fr = [V.get(), V.get()]
        k(f'v_add_u32 {v(fr[0])}, {L_T}, {v(rel)}')
        k(f'v_xor_b32 {v(fr[1])}, 64, {v(fr[0])}')
        V.put(rel)
        bp = V.get()
        k(f'v_lshlrev_b32 {v(bp)}, 4, {v(self.vQ)}')
        for i in range(56):
            k(f'v_dot2c_f32_bf16 {v(st + (i & 1))}, {s(sONE2)}, {v(xf + i)}')
            k(f'v_dot2c_f32_bf16 {v(st + 2 + (i & 1))}, {v(xf + i)}, {v(xf + i)}')
        k(f'v_add_f32 {v(st)}, {v(st)}, {v(st + 1)}')
        k(f'v_add_f32 {v(st + 2)}, {v(st + 2)}, {v(st + 3)}')
        self.butterfly([st, st + 2])
        self.ln_coef(st, st + 2, 448, st + 1, None)
        rr = V.get(4)
        k('s_nop 0')
        for r in range(4):
            k(f'ds_bpermute_b32 {v(rr + r)}, {v(bp)}, {v(st + 1)} offset:{4 * r}')
        k.wait(ftoks)
        k('s_barrier')
        self.stamp(f'r1gemm{L}')
        D = V.get(16)
        addrs = [(fr[j & 1], cf * SLOT + (j >> 1) * 1024) for j in range(14) for cf in range(4)]
        self.lds_stream(addrs, lambda i, r: self.mfma(D + 4 * (i & 3), v(xf + 4 * (i >> 2), 4), v(r, 4),
                                                      v(D + 4 * (i & 3), 4) if i >= 4 else '0'))
        V.put(xf, 56)
        V.put(st, 4)
        V.put(bp)
        ex, tw, tr, ts = fr[0], fr[1], V.get(), V.get()
        t0, t1 = sT[0], sT[1]
        k(f's_lshl_b32 {s(t0)}, {s(sGSEL)}, 10')
        k(f's_lshl_b32 {s(t1)}, {s(sHALF)}, 3')
        k(f's_add_u32 {s(t0)}, {s(t0)}, {s(t1)}')
        k(f'v_add_u32 {v(ex)}, {s(t0)}, {v(self.vL16[0])}')
        wr = []
        for cf in range(4):
            d = D + 4 * cf
            k(f'v_pk_mul_f32 {v(d, 2)}, {v(d, 2)}, {v(rr, 2)}')
            k(f'v_pk_mul_f32 {v(d + 2, 2)}, {v(d + 2, 2)}, {v(rr + 2, 2)}')
            k(f'v_cvt_pk_bf16_f32 {v(d)}, {v(d)}, {v(d + 1)}')
            k(f'v_cvt_pk_bf16_f32 {v(d + 1)}, {v(d + 2)}, {v(d + 3)}')
            wr.append(k(f'ds_write_b64 {v(ex)}, {v(d, 2)} offset:{L_EX + 2048 * cf}'))
        V.put(rr, 4)
        k(f's_lshl_b32 {s(t0)}, {s(sW)}, 11')
        k(f's_add_u32 {s(t0)}, {s(t0)}, {L_BN}')
        k(f'v_add_u32 {v(tr)}, {s(t0)}, {v(self.vL16[0])}')
        k(f'v_lshl_add_u32 {v(tw)}, {v(self.vN)}, 7, {s(t0)}')
        k(f'v_lshl_add_u32 {v(tw)}, {v(self.vPc)}, 4, {v(tw)}')
        k.wait(wr)
        k('s_barrier')
        E = V.get(32)
        for ks in range(2):
            for cf in range(4):
                k(f'ds_read_b128 {v(E + 16 * ks + 4 * cf, 4)}, {v(self.vL16[0])} offset:{L_EX + (2 * cf + ks) * 1024}')
        t = V.get()
        k(f'v_lshrrev_b32 {v(ts)}, 3, {v(self.vLane)}')
        k(f'v_and_b32 {v(t)}, 7, {v(self.vLane)}')
        k(f'v_xor_b32 {v(t)}, {v(t)}, {v(ts)}')
        k(f'v_mul_u32_u24 {v(ts)}, 28672, {v(ts)}')
        k(f'v_lshl_add_u32 {v(ts)}, {v(t)}, 4, {v(ts)}')
        k(f'v_xor_b32 {v(t)}, 64, {v(tw)}')
        k(f's_mul_i32 {s(t0)}, {s(sW)}, {16 * 28672}')
        k(f's_lshl_b32 {s(t1)}, {s(sCT)}, 12')
        k(f's_add_u32 {s(t0)}, {s(t0)}, {s(t1)}')
        k(f's_lshl_b32 {s(t1)}, {s(sRB)}, 7')
        k(f's_add_u32 {s(t0)}, {s(t0)}, {s(t1)}')
        k(f's_add_u32 {s(t0)}, {s(t0)}, {TT[L]}')
        k(f's_add_u32 {s(t1)}, {s(t0)}, {8 * 28672}')
        C, P, N = self.vM1, self.vM1 + 8, self.vM1 + 16
        for ks in range(2):
            e = E + 16 * ks
            for pos in range(2):
                self.mfma(D + 4 * pos, v(e + 4 * pos, 4), v(C + 4 * ks, 4), v(D + 4 * pos, 4) if ks else '0')
            for pos in range(2):
                self.mfma(D + 8 + 4 * pos, v(e + 4 * pos, 4), v(N + 4 * ks, 4), v(D + 8 + 4 * pos, 4) if ks else '0')
            for pos in range(2):
                self.mfma(D + 4 * pos, v(e + 8 + 4 * pos, 4), v(P + 4 * ks, 4), v(D + 4 * pos, 4))
            for pos in range(2):
                self.mfma(D + 8 + 4 * pos, v(e + 8 + 4 * pos, 4), v(C + 4 * ks, 4), v(D + 8 + 4 * pos, 4))
        for ri in range(2):
            for i in range(4):
                k(f'v_cvt_pk_bf16_f32 {v(E + 4 * ri + i)}, {v(D + 8 * ri + 2 * i)}, {v(D + 8 * ri + 2 * i + 1)}')
            k(f'ds_write_b128 {v(t if ri else tw)}, {v(E + 4 * ri, 4)}')
        for u in range(2):
            k(f'ds_read_b128 {v(E + 8 + 4 * u, 4)}, {v(tr)} offset:{1024 * u}')
        toks = [k(f'buffer_store_dwordx4 {v(E + 8 + 4 * u, 4)}, {v(ts)}, {s(sWS, 4)}, {s(t1 if u else t0)} offen sc1') for u in range(2)]
        self.stamp(f'r1st{L}')
        V.put(E, 32)
        V.put(D, 16)
        for r in (ex, tw, tr, ts, t):
            V.put(r)
        return toks

    def ft_flag(self, L):
        k = self.k
        k(f's_mul_i32 {s(sT[0])}, {s(sRB)}, 7')
        k(f's_add_u32 {s(sT[0])}, {s(sT[0])}, {s(sCT)}')
        k(f's_lshl_b32 {s(sT[0])}, {s(sT[0])}, 7')
        k(f's_add_u32 {s(sT[0])}, {s(sT[0])}, {FT[L]}')
        self.flag(sT[0], True)

    def r1_first(self):
        k, V = self.k, self.V
        xo = self.xrow_offsets()
        t0, t1 = sT[0], sT[1]
        k(f's_lshl_b32 {s(t0)}, {s(sGSEL)}, 5')
        k(f's_lshl_b32 {s(t1)}, {s(sHALF)}, 10')
        k(f's_add_u32 {s(t0)}, {s(t0)}, {s(t1)}')
        k(f's_add_u32 {s(t0)}, {s(t0)}, {s(sRB)}')
        k(f's_mul_i32 {s(t0)}, {s(t0)}, 896')
        k(f's_mul_i32 {s(t1)}, {s(sW)}, {SLOT}')
        xtoks = self.dma_rows(sX, xo, t0, t1)
        for r in xo:
            V.put(r)
        ftoks = self.f_dma()
        self.small_loads()
        raw = self.wsp_load()
        self.consts()
        self.table_m1()
        rel = self.frag_rel()
        xr = [V.get(), V.get()]
        k(f's_mul_i32 {s(t1)}, {s(sW)}, {SLOT}')
        k(f'v_add_u32 {v(xr[0])}, {s(t1)}, {v(rel)}')
        k(f'v_xor_b32 {v(xr[1])}, 64, {v(xr[0])}')
        xf = V.get(56)
        k.wait(xtoks)
        self.stamp('x0')
        for j in range(14):
            k(f'ds_read_b128 {v(xf + 4 * j, 4)}, {v(xr[j & 1])} offset:{(j >> 1) * 1024}')
        for r in xr:
            V.put(r)
        toks = self.r1(0, xf, ftoks, rel)
        self.small_finish()
        k.wait(toks)
        k('s_barrier')
        self.ft_flag(0)
        toks = self.wsp_store(raw)
        k.wait(toks)
        k('s_barrier')
        self.fsp_flag()

    def r1_second(self):
        k, V = self.k, self.V
        k('s_barrier')
        ftoks = self.f_dma()
        rel = self.frag_rel()
        t0, t1 = sT[0], sT[1]
        k(f's_sub_u32 {s(t0)}, 32, {s(sRB)}')
        k(f's_and_b32 {s(t0)}, {s(t0)}, 31')
        k(f's_cmp_eq_u32 {s(sGSEL)}, 0')
        k(f's_cselect_b32 {s(t0)}, {s(sRB)}, {s(t0)}')
        k(f's_lshl_b32 {s(t0)}, {s(t0)}, 2')
        k(f's_add_u32 {s(t0)}, {s(t0)}, {s(sW)}')
        k(f's_lshl_b32 {s(t1)}, {s(t0)}, 10')
        k(f's_add_u32 {s(t1)}, {s(t1)}, {FX}')
        k(f's_mul_i32 {s(t0)}, {s(t0)}, {SLOT}')
        k(f's_add_u32 {s(t0)}, {s(t0)}, {X2}')
        self.poll(self.vL128, t1, 7)
        self.stamp('fx')
        xf = V.get(56)
        for j in range(14):
            if j and j % 4 == 0:
                k(f's_add_u32 {s(t0)}, {s(t0)}, 4096')
            k(f'buffer_load_dwordx4 {v(xf + 4 * j, 4)}, {v(self.vL16[0])}, {s(sWS, 4)}, {s(t0)} offen offset:{1024 * (j % 4)} sc1')
        toks = self.r1(1, xf, ftoks, rel)
        k.wait(toks)
        k('s_barrier')
        self.ft_flag(1)

    def w_src(self, half, sff, d):
        k = self.k
        k(f's_mul_i32 {s(d)}, {s(sff)}, {SLOT}')
        k(f's_add_u32 {s(d)}, {s(d)}, {WIN + half * 56 * SLOT}')

    def dma_split(self, ssrc, src_imm, dst, n):
        k = self.k
        per = -(-n // 4)
        t0, t1 = sT[9], sT[10]
        k(f's_mul_i32 {s(t1)}, {s(sW)}, {1024 * per}')
        if n % 4:
            k(f's_min_u32 {s(t1)}, {s(t1)}, {1024 * (n - per)}')
        k(f's_add_u32 {s(t0)}, {s(ssrc)}, {s(t1)}')
        return self.dma_linear(t0, t1, per, src_imm=src_imm, dst_imm=dst)

    def r2(self, L):
        k, V = self.k, self.V
        t0, t1, t2 = sT[0], sT[1], sT[2]
        ad, am = V.get(56), V.get(56)
        xa, xb = V.get(), V.get()
        xp = [V.get(), V.get()]
        k(f'v_mul_u32_u24 {v(xp[0])}, 1792, {v(self.vQ)}')
        k(f'v_sub_u32 {v(xp[1])}, {49 * 256}, {v(xp[0])}')
        for r in xp:
            k(f'v_lshl_add_u32 {v(r)}, {v(self.vN)}, 4, {v(r)}')
        A = V.get(56)
        if L == 0:
            xo = self.xrow_offsets()
            k(f's_lshl_b32 {s(t0)}, {s(sHALF)}, 10')
            k(f's_add_u32 {s(t0)}, {s(t0)}, {s(sG)}')
            k(f's_mul_i32 {s(t0)}, {s(t0)}, 896')
            k(f's_mul_i32 {s(t1)}, {s(sW)}, {SLOT}')
            k(f's_add_u32 {s(t1)}, {s(t1)}, {L_T}')
            xtoks = self.dma_rows(sX, xo, t0, t1)
            rb_, sw = xo
            k(f'v_lshrrev_b32 {v(rb_)}, 3, {v(self.vN)}')
            k(f'v_mul_u32_u24 {v(rb_)}, 7168, {v(rb_)}')
            k(f'v_and_b32 {v(sw)}, 7, {v(self.vN)}')
            k(f'v_lshl_add_u32 {v(rb_)}, {v(sw)}, 7, {v(rb_)}')
            k(f'v_add_u32 {v(rb_)}, {s(t1)}, {v(rb_)}')
            k(f'v_lshrrev_b32 {v(sw)}, 1, {v(self.vN)}')
            self.table_m2()
            k(f's_mov_b32 {s(t0)}, {FPI}')
            self.poll(self.vL128, t0, 32)
            m, u, w_ = V.get(), V.get(), V.get()
            for jp in range(14):
                k(f'v_mad_i32_i24 {v(m)}, {v(self.vQ)}, {7 if jp < 7 else -7}, {jp if jp < 7 else 42 + jp}')
                k(f'v_lshrrev_b32 {v(u)}, 3, {v(m)}')
                k(f'v_and_b32 {v(m)}, 7, {v(m)}')
                k(f'v_xor_b32 {v(m)}, {v(m)}, {v(sw)}')
                k(f'v_lshl_add_u32 {v(w_)}, {v(u)}, 10, {v(rb_)}')
                k(f'v_lshl_add_u32 {v(w_)}, {v(m)}, 4, {v(w_)}')
                k(f'ds_read_b128 {v(A + 4 * jp, 4)}, {v(w_)}')
            for r in (m, u, w_, rb_, sw):
                V.put(r)
        else:
            k(f's_lshl_b32 {s(t1)}, {s(sRW)}, 10')
            k(f's_add_u32 {s(t1)}, {s(t1)}, {FX}')
            k(f's_mul_i32 {s(t0)}, {s(sRW)}, {SLOT}')
            k(f's_add_u32 {s(t0)}, {s(t0)}, {X2}')
            self.poll(self.vL128, t1, 7)
            for jp in range(14):
                k(f'buffer_load_dwordx4 {v(A + 4 * jp, 4)}, {v(xp[jp // 7])}, {s(sWS, 4)}, {s(t0)} offen offset:{256 * (jp % 7)} sc1')
        self.w_src(1, sFF0, t0)
        wtoks = self.dma_split(t0, 0, L_W, 84)
        self.w_src(1, sFF6, t0)
        wtoks += self.dma_split(t0, 0, L_W + 6 * SLOT, 14)
        for jp in range(14):
            for rho in range(4):
                src = A + 4 * jp + rho
                if jp < 7:
                    lo = ad + 8 * jp + 2 * rho
                    hi = lo + 1
                else:
                    u_ = 8 * (jp - 7) + 2 * rho
                    lo = am + 56 - u_ if u_ else xb
                    hi = am + 55 - u_
                k(f'v_lshlrev_b32 {v(lo)}, 16, {v(src)}')
                k(f'v_and_b32 {v(hi)}, 0xffff0000, {v(src)}')
        k(f'v_mov_b32 {v(am)}, 0')
        k(f'v_mov_b32 {v(xa)}, {v(ad)}')
        tr = [[V.get(), V.get()], [V.get(), V.get()]]
        bp, t = V.get(), V.get()
        k(f'v_lshrrev_b32 {v(bp)}, 5, {v(self.vLane)}')
        k(f'v_lshlrev_b32 {v(bp)}, 10, {v(bp)}')
        k(f'v_and_b32 {v(t)}, 31, {v(self.vLane)}')
        k(f'v_lshl_add_u32 {v(bp)}, {v(t)}, 4, {v(bp)}')
        k(f'v_and_b32 {v(t)}, 1, {v(self.vQ)}')
        k(f'v_lshl_add_u32 {v(bp)}, {v(t)}, 3, {v(bp)}')
        k(f's_mul_i32 {s(t0)}, {s(sGSEL)}, 28672')
        k(f's_sub_u32 {s(t1)}, 28672, {s(t0)}')
        k(f's_cmp_eq_u32 {s(sRB)}, 0')
        k(f's_cselect_b32 {s(t1)}, {s(t0)}, {s(t1)}')
        for dr, sb in enumerate((t0, t1)):
            k(f's_add_u32 {s(sb)}, {s(sb)}, {L_T}')
            k(f'v_add_u32 {v(tr[dr][0])}, {s(sb)}, {v(bp)}')
            k(f'v_xor_b32 {v(tr[dr][1])}, 8, {v(tr[dr][0])}')
        k(f'v_add_u32 {v(bp)}, 16, {v(self.vLane)}')
        k(f'v_and_b32 {v(bp)}, 63, {v(bp)}')
        k(f'v_lshlrev_b32 {v(bp)}, 2, {v(bp)}')
        if L == 0:
            k('s_barrier')
        k(f's_mul_i32 {s(t0)}, {s(sW)}, {56 * 128}')
        k(f's_add_u32 {s(t0)}, {s(t0)}, {FT[L]}')
        k(f's_lshl_b32 {s(t2)}, {s(sW)}, 10')
        src = [sT[3], sT[4]]
        for gi, g in enumerate((sGA, sGB)):
            k(f's_mul_i32 {s(src[gi])}, {s(g)}, 28672')
            k(f's_add_u32 {s(src[gi])}, {s(src[gi])}, {s(t2)}')
        self.stamp(f'ftw{L}')
        self.poll(self.vL128, t0, 56)
        self.stamp(f'ft{L}')
        ttoks = []
        for c in range(7):
            for gi in range(2):
                k(f's_add_u32 {s(t1)}, {s(src[gi])}, {TT[L] + 4096 * c}')
                k(f's_add_u32 m0, {s(t2)}, {L_T + gi * 28672 + 4096 * c}')
                ttoks.append(k(f'buffer_load_dwordx4 {v(self.vL16[0])}, {s(sWS, 4)}, {s(t1)} offen sc1 lds'))
        k.wait(ttoks, wtoks)
        k('s_barrier')
        self.stamp(f'tld{L}')
        if L == 0:
            lb = k.label('nn')
            k(f's_or_b32 {s(t0)}, s2, {s(sW)}')
            k(f's_cbranch_scc1 {lb}')
            k.cond = True
            k(f'buffer_store_dword {v(self.vNON)}, off, {s(sWS, 4)}, 0 offset:{NONCE} sc1')
            k.cond = False
            k(f'{lb}:')
        order = [(dr, i, ks) for i in range(14) for dr in (1, 0) for ks in range(2)]

        def rd(reg, x):
            dr, i, ks = x
            for h in range(2):
                k(f'ds_read_b64_tr_b16 {v(reg + 2 * h, 2)}, {v(tr[dr][i & 1])} offset:{(i >> 1) * 4096 + ks * 2048 + h * 512}')

        def use(n, reg):
            dr, i, ks = order[n]
            acc = (am if dr else ad) + 4 * i
            self.mfma(acc, v(reg, 4), v(self.vM2 + 8 * dr + 4 * ks, 4), v(acc, 4))
            if n == 8:
                k(f'ds_bpermute_b32 {v(t)}, {v(bp)}, {v(am)}')
            if n == 16:
                k(f'v_add_f32 {v(am)}, {v(t)}, {v(xb)}')
                k(f'v_cndmask_b32 {v(ad)}, {v(ad)}, {v(xa)}, {s(sQ0, 2)}')
        self.lds_stream(order, use, depth=4, rd=rd)
        for r in (xa, xb, bp, t, *tr[0], *tr[1]):
            V.put(r)
        k('s_barrier')
        self.w_src(0, sFF0, sT[5])
        w1a = self.dma_split(sT[5], 0, L_T, 56)
        self.stamp(f'st2{L}')
        S = V.get(8)
        accs = [ad + 2 * i for i in range(28)] + [am + 2 * i for i in range(28)]
        for c in range(2):
            x, y = accs[c], accs[2 + c]
            k(f'v_pk_add_f32 {v(S + 2 * c, 2)}, {v(x, 2)}, {v(y, 2)}')
            k(f'v_pk_mul_f32 {v(S + 4 + 2 * c, 2)}, {v(x, 2)}, {v(x, 2)}')
        for c in range(2):
            y = accs[2 + c]
            k(f'v_pk_fma_f32 {v(S + 4 + 2 * c, 2)}, {v(y, 2)}, {v(y, 2)}, {v(S + 4 + 2 * c, 2)}')
        for i, x in enumerate(accs[4:]):
            c = i & 1
            k(f'v_pk_add_f32 {v(S + 2 * c, 2)}, {v(S + 2 * c, 2)}, {v(x, 2)}')
            k(f'v_pk_fma_f32 {v(S + 4 + 2 * c, 2)}, {v(x, 2)}, {v(x, 2)}, {v(S + 4 + 2 * c, 2)}')
        k(f'v_pk_add_f32 {v(S, 2)}, {v(S, 2)}, {v(S + 2, 2)}')
        k(f'v_pk_add_f32 {v(S + 4, 2)}, {v(S + 4, 2)}, {v(S + 6, 2)}')
        k(f'v_add_f32 {v(S)}, {v(S)}, {v(S + 1)}')
        k(f'v_add_f32 {v(S + 4)}, {v(S + 4)}, {v(S + 5)}')
        self.butterfly([S, S + 4])
        self.ln_coef(S, S + 4, 448, S + 2, S + 3)

        def pack(dst, jp):
            for rho in range(4):
                if jp < 7:
                    lo = ad + 8 * jp + 2 * rho
                    hi = lo + 1
                else:
                    u_ = 8 * (jp - 7) + 2 * rho
                    lo = am + (56 - u_) % 56
                    hi = am + 55 - u_
                k(f'v_cvt_pk_bf16_f32 {v(dst + rho)}, {v(lo)}, {v(hi)}')
        xs = V.get(8)
        done, skip = k.label('x1d'), k.label('x1s')
        k(f's_mul_i32 {s(t0)}, {s(sRW)}, {SLOT}')
        k(f's_lshl_b32 {s(t1)}, {s(sCT)}, 8')
        k(f's_add_u32 {s(t0)}, {s(t0)}, {s(t1)}')
        k(f's_add_u32 {s(t0)}, {s(t0)}, {X1[L]}')
        k.cond = True
        for c in range(7):
            nx = k.label('x1n')
            k(f's_cmp_lg_u32 {s(sCT)}, {c}')
            k(f's_cbranch_scc1 {nx if c < 6 else skip}')
            pack(xs, c)
            pack(xs + 4, 7 + c)
            if c < 6:
                k(f's_branch {done}')
                k(f'{nx}:')
        k(f'{done}:')
        for h in range(2):
            k(f'buffer_store_dwordx4 {v(xs + 4 * h, 4)}, {v(xp[h])}, {s(sWS, 4)}, {s(t0)} offen sc1')
        k.cond = False
        k(f'{skip}:')
        for x in accs:
            k(f'v_pk_fma_f32 {v(x, 2)}, {v(x, 2)}, {v(S + 2, 2)}, {v(S + 2, 2)} op_sel:[0,0,1] op_sel_hi:[1,0,1]')
        for jp in range(14):
            pack(A + 4 * jp, jp)
        V.put(xs, 8)
        V.put(S, 8)
        V.put(ad, 56)
        V.put(am, 56)
        for r in xp:
            V.put(r)
        self.stamp(f'ln2{L}')
        z2 = V.get(28)
        if L == 0:
            k(f's_lshl_b32 {s(t0)}, {s(sRB)}, 10')
            k(f's_add_u32 {s(t0)}, {s(t0)}, {FSP}')
            self.poll(self.vL128, t0, 8)
            k(f's_lshl_b32 {s(sT[6])}, {s(sRW)}, 16')
            k(f's_add_u32 {s(sT[6])}, {s(sT[6])}, {WSP}')

        def wsp_loads(lo, hi):
            for i in range(lo, hi):
                if i and i % 4 == 0:
                    k(f's_add_u32 {s(sT[6])}, {s(sT[6])}, 4096')
                k(f'buffer_load_dwordx4 {a(4 * i, 4)}, {v(self.vL16[0])}, {s(sWS, 4)}, {s(sT[6])} offen offset:{1024 * (i % 4)} sc1')

        def gemm(slots, dst, wfirst):
            addrs = [self.lds_base(b + 1024 * j) for b in slots for j in range(14)]

            def use(i, r):
                d, x = dst + 4 * (i // 14), v(A + 4 * (i % 14), 4)
                ops = (v(r, 4), x) if wfirst else (x, v(r, 4))
                self.mfma(d, ops[0], ops[1], v(d, 4) if i % 14 else '0')
            self.lds_stream(addrs, use)
        body = k.capture(lambda: gemm([L_W + p * SLOT for p in range(7)], z2, False))
        if L == 0:
            body = interleave(body, k.capture(lambda: wsp_loads(0, 32)))
        k.add(body)
        self.stamp(f'z2g{L}')
        self.gelu(z2, 28)
        S = V.get(8)
        for h in range(2):
            k(f'v_pk_add_f32 {v(S + 2 * h, 2)}, {v(z2 + 2 * h, 2)}, {v(z2 + 4 + 2 * h, 2)}')
            k(f'v_pk_mul_f32 {v(S + 4 + 2 * h, 2)}, {v(z2 + 2 * h, 2)}, {v(z2 + 2 * h, 2)}')
        for p in range(1, 7):
            for h in range(2):
                x = z2 + 4 * p + 2 * h
                if p > 1:
                    k(f'v_pk_add_f32 {v(S + 2 * h, 2)}, {v(S + 2 * h, 2)}, {v(x, 2)}')
                k(f'v_pk_fma_f32 {v(S + 4 + 2 * h, 2)}, {v(x, 2)}, {v(x, 2)}, {v(S + 4 + 2 * h, 2)}')
        for sh in (8, 4, 2, 1):
            for i in range(8):
                k(f'v_add_f32_dpp {v(S + i)}, {v(S + i)}, {v(S + i)} row_ror:{sh} row_mask:0xf bank_mask:0xf')
        G = V.get(8)
        so, sp = V.get(), V.get()
        for h in range(2):
            b = S + 4 * h
            k(f'v_cndmask_b32 {v(b)}, {v(b)}, {v(b + 1)}, {s(sM1, 2)}')
            k(f'v_cndmask_b32 {v(b + 2)}, {v(b + 2)}, {v(b + 3)}, {s(sM1, 2)}')
            k(f'v_cndmask_b32 {v(G + h)}, {v(b)}, {v(b + 2)}, {s(sM2, 2)}')
        k(f'v_mov_b32 {v(G + 2)}, {s(sNON)}')
        k(f'v_mov_b32 {v(G + 3)}, {s(sNON)}')
        k(f'v_and_b32 {v(so)}, 3, {v(self.vN)}')
        k(f'v_lshl_add_u32 {v(so)}, {v(self.vQ)}, 2, {v(so)}')
        k(f'v_lshlrev_b32 {v(so)}, 4, {v(so)}')
        k(f's_lshl_b32 {s(sT[7])}, {s(sRW)}, 11')
        k(f's_add_u32 {s(sT[7])}, {s(sT[7])}, {ST[L]}')
        k(f's_lshl_b32 {s(t1)}, {s(sCT)}, 8')
        k(f's_add_u32 {s(t1)}, {s(t1)}, {s(sT[7])}')
        k('s_mov_b32 exec_lo, 0x000f000f')
        k('s_mov_b32 exec_hi, 0x000f000f')
        k(f'buffer_store_dwordx4 {v(G, 4)}, {v(so)}, {s(sWS, 4)}, {s(t1)} offen sc1')
        k('s_mov_b64 exec, -1')
        self.stamp(f'stp{L}')
        k(f'v_lshrrev_b32 {v(sp)}, 2, {v(self.vN)}')
        k(f'v_lshl_add_u32 {v(sp)}, {v(sp)}, 8, {v(so)}')
        k.wait(w1a)
        k('s_barrier')
        w1b = self.dma_split(sT[5], 4 * SLOT, L_W, 28)
        self.w_src(0, sFF6, t0)
        w1b += self.dma_split(t0, 0, L_W + 2 * SLOT, 14)
        z1 = V.get(28)
        gemm([L_T + p * SLOT for p in range(4)], z1, True)
        self.stamp(f'z1a{L}')
        lp, ld = k.label('sp'), k.label('sg')
        k(f'{lp}:')
        for h in range(2):
            k(f'buffer_load_dwordx4 {v(G + 4 * h, 4)}, {v(sp)}, {s(sWS, 4)}, {s(sT[7])} offen offset:{1024 * h} sc1')
        k('s_waitcnt vmcnt(0)')
        k(f'v_cmp_ne_u32 vcc, {s(sNON)}, {v(G + 2)}')
        k(f'v_cmp_ne_u32 {s(t0, 2)}, {s(sNON)}, {v(G + 6)}')
        k(f's_or_b64 vcc, vcc, {s(t0, 2)}')
        k(f's_cbranch_scc0 {ld}')
        k(f's_sub_u32 {s(sBUD)}, {s(sBUD)}, 1')
        k(f's_cbranch_scc0 {lp}')
        k(f's_mov_b32 {s(sBUD)}, 0')
        k(f'{ld}:')
        self.stamp(f'stg{L}')
        k(f'v_pk_add_f32 {v(G, 2)}, {v(G, 2)}, {v(G + 4, 2)}')
        for sh in (4, 8):
            for i in range(2):
                k(f'v_add_f32_dpp {v(G + i)}, {v(G + i)}, {v(G + i)} row_ror:{sh} row_mask:0xf bank_mask:0xf')
        self.ln_coef(G, G + 1, 896, G + 2, G + 3)
        k(f'v_lshrrev_b32 {v(so)}, 1, {v(self.vQ)}')
        k(f'v_lshlrev_b32 {v(so)}, 8, {v(so)}')
        for h in range(2):
            for r in range(4):
                k(f'v_mov_b32_dpp {v(S + 4 * h + r)}, {v(G + 2 + h)} quad_perm:[{r},{r},{r},{r}] row_mask:0xf bank_mask:0xf')
        k(f'v_lshl_add_u32 {v(so)}, {v(self.vN)}, 4, {v(so)}')
        k(f'v_and_b32 {v(sp)}, 1, {v(self.vQ)}')
        k(f'v_lshl_add_u32 {v(so)}, {v(sp)}, 16, {v(so)}')
        k(f's_lshl_b32 {s(t2)}, {s(sRW)}, 9')
        k(f's_add_u32 {s(t2)}, {s(t2)}, {Z2[L]}')
        k(f's_lshl_b32 {s(t0)}, {s(sFF0)}, 16')
        k(f's_add_u32 {s(t0)}, {s(t0)}, {s(t2)}')
        k(f's_lshl_b32 {s(t1)}, {s(sFF6)}, 16')
        k(f's_add_u32 {s(t1)}, {s(t1)}, {s(t2)}')
        ztoks = []
        for pi in range(4):
            d = G + 4 * (pi & 1)
            for e in range(2 if pi < 3 else 1):
                x = z2 + 4 * (2 * pi + e)
                for h in range(2):
                    k(f'v_pk_fma_f32 {v(x + 2 * h, 2)}, {v(x + 2 * h, 2)}, {v(S + 2 * h, 2)}, {v(S + 4 + 2 * h, 2)}')
                for h in range(2):
                    k(f'v_cvt_pk_bf16_f32 {v(d + 2 * e + h)}, {v(x + 2 * h)}, {v(x + 2 * h + 1)}')
            for h in range(2):
                k(f'v_permlane16_swap_b32 {v(d + h)}, {v(d + 2 + h)}')
            if pi == 3:
                k('s_mov_b32 exec_lo, 0xffff')
                k('s_mov_b32 exec_hi, 0xffff')
            ztoks.append(k(f'buffer_store_dwordx4 {v(d, 4)}, {v(so)}, {s(sWS, 4)}, {s(t0 if pi < 3 else t1)} offen sc1'))
            if pi < 2:
                k(f's_add_u32 {s(t0)}, {s(t0)}, 0x20000')
        k('s_mov_b64 exec, -1')
        self.stamp(f'z2s{L}')
        V.put(z2, 28)
        V.put(S, 8)
        V.put(G, 8)
        V.put(so)
        V.put(sp)
        k.wait(w1b)
        k('s_barrier')
        gemm([L_W + p * SLOT for p in range(3)], z1 + 16, True)
        V.put(A, 56)
        k(f's_lshl_b32 {s(t0)}, {s(sCT)}, 5')
        k(f's_add_u32 {s(t0)}, {s(t0)}, {s(sRB)}')
        k(f's_lshl_b32 {s(t0)}, {s(t0)}, 7')
        k(f's_add_u32 {s(t0)}, {s(t0)}, {FZ[L]}')
        k.wait(ztoks)
        k('s_barrier')
        self.flag(t0, True)
        self.stamp(f'fzs{L}')
        if L == 0:
            k(f's_mov_b32 {s(t0)}, {FPO}')
            self.poll(self.vL128, t0, 32)
        k(f's_mul_i32 {s(t0)}, {s(sCT)}, 114688')
        k(f's_add_u32 {s(t0)}, {s(t0)}, {WOUT}')
        loads = k.capture(lambda: self.dma_split(t0, 0, L_WO, 112))
        if L == 0:
            loads += k.capture(lambda: wsp_loads(32, 64))
        k.add(interleave(k.capture(lambda: self.gelu(z1, 28)), loads))
        return z1

    def g(self, L, z1):
        k, V = self.k, self.V
        t0, t1, t2 = sT[0], sT[1], sT[2]
        zb0, zb6, hb0, hb6, so = sT[3], sT[4], sT[5], sT[6], sT[7]
        rw, rr, h6 = V.get(), V.get(), V.get()
        k(f's_lshl_b32 {s(t0)}, {s(sW)}, 12')
        k(f'v_add_u32 {v(rw)}, {s(t0)}, {v(self.vL16[0])}')
        k(f's_lshl_b32 {s(t0)}, {s(sW)}, 10')
        k(f'v_add_u32 {v(rr)}, {s(t0)}, {v(self.vL16[0])}')
        k(f's_and_b32 {s(t0)}, {s(sCT)}, 1')
        k(f's_lshl_b32 {s(t0)}, {s(t0)}, 3')
        k(f'v_add_u32 {v(h6)}, {s(t0)}, {v(self.vL16[0])}')
        k(f's_lshl_b32 {s(t0)}, {s(sW)}, 14')
        k(f's_add_u32 {s(t0)}, {s(t0)}, {Z2[L]}')
        k(f's_mul_i32 {s(t1)}, {s(sRW)}, 28672')
        k(f's_add_u32 {s(t1)}, {s(t1)}, {HH[L]}')
        for zb, hb, ff in ((zb0, hb0, sFF0), (zb6, hb6, sFF6)):
            k(f's_lshl_b32 {s(zb)}, {s(ff)}, 16')
            k(f's_add_u32 {s(zb)}, {s(zb)}, {s(t0)}')
            k(f's_lshr_b32 {s(hb)}, {s(ff)}, 1')
            k(f's_lshl_b32 {s(hb)}, {s(hb)}, 10')
            k(f's_add_u32 {s(hb)}, {s(hb)}, {s(t1)}')
        k(f's_lshl_b32 {s(t0)}, {s(sCT)}, 2')
        k(f's_add_u32 {s(t0)}, {s(t0)}, {s(sW)}')
        k(f's_lshl_b32 {s(t0)}, {s(t0)}, 10')
        k(f's_add_u32 {s(t0)}, {s(t0)}, {FZ[L]}')
        self.stamp(f'fzw{L}')
        self.poll(self.vL128, t0, 8)
        self.stamp(f'fz{L}')
        DEPTH, PRE = 20, 8
        buf, acc, T, Hq = V.get(4 * DEPTH), V.get(32), V.get(16), V.get(8)
        htoks = []

        def ld(n):
            p, ks = divmod(n, 16)
            if ks % 4 == 0:
                k(f's_add_u32 {s(so)}, {s(zb0 if p < 6 else zb6)}, {(p % 6) * 65536 + ks * 1024}')
            k(f'buffer_load_dwordx4 {v(buf + 4 * (n % DEPTH), 4)}, {v(self.vL16[0])}, {s(sWS, 4)}, {s(so)} offen offset:{1024 * (ks % 4)} sc1')

        def red_write(p):
            return [k(f'ds_write_b128 {v(rw)}, {v(acc + 16 * (p & 1) + 4 * rf, 4)} offset:{L_RED + (p & 1) * 16384 + rf * 1024}')
                    for rf in range(4)]

        def red_read(p):
            for src in range(4):
                k(f'ds_read_b128 {v(T + 4 * src, 4)}, {v(rr)} offset:{L_RED + (p & 1) * 16384 + src * 4096}')

        def red_fin(p):
            hq = Hq + 4 * ((p >> 1) & 1)
            for r in range(4):
                k(f'v_add_f32 {v(T + r)}, {v(T + r)}, {v(T + 4 + r)}')
            for r in range(4):
                k(f'v_add_f32 {v(T + 8 + r)}, {v(T + 8 + r)}, {v(T + 12 + r)}')
            for r in range(4):
                k(f'v_add_f32 {v(T + r)}, {v(self.vBias)}, {v(T + r)}')
            for r in range(4):
                k(f'v_add_f32 {v(T + r)}, {v(T + r)}, {v(T + 8 + r)}')
            for r in range(4):
                k(f'v_mul_f32 {v(T + r)}, {v(T + r)}, {v(z1 + 4 * p + r)}')
            for h in range(2):
                k(f'v_cvt_pk_bf16_f32 {v(hq + 2 * (p & 1) + h)}, {v(T + 2 * h)}, {v(T + 2 * h + 1)}')
            if p == 6:
                htoks.append(k(f'buffer_store_dwordx2 {v(hq, 2)}, {v(h6)}, {s(sWS, 4)}, {s(hb6)} offen sc1'))
            elif p & 1:
                htoks.append(k(f'buffer_store_dwordx4 {v(hq, 4)}, {v(self.vL16[0])}, {s(sWS, 4)}, {s(hb0)} offen offset:{1024 * (p >> 1)} sc1'))

        issued = 0
        while issued < PRE:
            ld(issued)
            issued += 1
        for p in range(7):
            wr = k.capture(lambda: red_write(p - 1)) if p else []
            rd_ = k.capture(lambda: red_read(p - 1)) if p else []
            fin = k.capture(lambda: red_fin(p - 1)) if p else []
            for ks in range(16):
                n = 16 * p + ks
                cnt = 0
                while issued < 112 and issued - n < DEPTH - 1 and cnt < (2 if n % 4 == 0 else 1):
                    ld(issued)
                    issued += 1
                    cnt += 1
                for rf in range(4):
                    d = acc + 16 * (p & 1) + 4 * rf
                    self.mfma(d, v(buf + 4 * (n % DEPTH), 4), a(16 * ks + 4 * rf, 4), v(d, 4) if ks else '0')
                    if p and 9 <= ks and fin:
                        k.add([fin.pop(0)])
                if p and 1 <= ks <= 4:
                    k.add([wr[ks - 1]])
                if p and ks == 6:
                    k.wait(wr)
                    k('s_barrier')
                    k.add(rd_)
            assert not fin
        self.stamp(f'gm{L}')
        wr = red_write(6)
        k(f's_lshl_b32 {s(t0)}, {s(sRW)}, 3')
        k(f's_add_u32 {s(t0)}, {s(t0)}, {s(sCT)}')
        k(f's_lshl_b32 {s(t0)}, {s(t0)}, 7')
        k(f's_add_u32 {s(t0)}, {s(t0)}, {FH[L]}')
        k.wait(wr)
        k('s_barrier')
        red_read(6)
        red_fin(6)
        self.stamp(f'hs{L}')
        k.wait(htoks)
        self.flag(t0, False)
        V.put(buf, 4 * DEPTH)
        V.put(acc, 32)
        V.put(T, 16)
        V.put(Hq, 8)
        V.put(z1, 28)
        for r in (rw, rr, h6):
            V.put(r)

    def r3(self, L):
        k, V = self.k, self.V
        t0, t1, t2, xo = sT[0], sT[1], sT[2], sT[3]
        k(f's_lshl_b32 {s(t0)}, {s(sRW)}, 10')
        k(f's_add_u32 {s(t0)}, {s(t0)}, {FH[L]}')
        k(f's_mul_i32 {s(t1)}, {s(sRW)}, 28672')
        k(f's_add_u32 {s(t1)}, {s(t1)}, {HH[L]}')
        k(f's_mul_i32 {s(xo)}, {s(sRW)}, {SLOT}')
        k(f's_lshl_b32 {s(t2)}, {s(sCT)}, 11')
        k(f's_add_u32 {s(xo)}, {s(xo)}, {s(t2)}')
        k(f's_add_u32 {s(t2)}, {s(xo)}, {X1[L]}')
        k('s_waitcnt vmcnt(0)')
        self.stamp(f'fhw{L}')
        self.poll(self.vL128, t0, 8)
        self.stamp(f'fh{L}')
        DEPTH, PRE = 16, 8
        hb, xr, acc = V.get(4 * DEPTH), V.get(8), V.get(16)
        for h in range(2):
            k(f'buffer_load_dwordx4 {v(xr + 4 * h, 4)}, {v(self.vL16[0])}, {s(sWS, 4)}, {s(t2)} offen offset:{1024 * h} sc1')
        st = {'n': 0}

        def ld():
            n = st['n']
            st['n'] += 1
            if n and n % 4 == 0:
                k(f's_add_u32 {s(t1)}, {s(t1)}, 4096')
            k(f'buffer_load_dwordx4 {v(hb + 4 * (n % DEPTH), 4)}, {v(self.vL16[0])}, {s(sWS, 4)}, {s(t1)} offen offset:{1024 * (n % 4)} sc1')
        for _ in range(PRE):
            ld()
        for i in range(8):
            k(f'v_lshlrev_b32 {v(acc + 2 * i)}, 16, {v(xr + i)}')
            k(f'v_and_b32 {v(acc + 2 * i + 1)}, 0xffff0000, {v(xr + i)}')

        def use(i, r):
            kk, cf = divmod(i, 4)
            if cf in (0, 2) and st['n'] < 28 and st['n'] - kk < DEPTH and (cf == 0 or kk % 2 == 0):
                ld()
            self.mfma(acc + 4 * cf, v(r, 4), v(hb + 4 * (kk % DEPTH), 4), v(acc + 4 * cf, 4))
        self.lds_stream([self.lds_base(L_WO + 1024 * i) for i in range(112)], use)
        self.stamp(f'r3m{L}')
        if L == 0:
            k(f's_add_u32 {s(xo)}, {s(xo)}, {X2}')
            k(f's_lshl_b32 {s(t0)}, {s(sRW)}, 3')
            k(f's_add_u32 {s(t0)}, {s(t0)}, {s(sCT)}')
            k(f's_lshl_b32 {s(t0)}, {s(t0)}, 7')
            k(f's_add_u32 {s(t0)}, {s(t0)}, {FX}')
            toks = []
            for h in range(2):
                for i in range(4):
                    k(f'v_cvt_pk_bf16_f32 {v(xr + 4 * h + i)}, {v(acc + 8 * h + 2 * i)}, {v(acc + 8 * h + 2 * i + 1)}')
                toks.append(k(f'buffer_store_dwordx4 {v(xr + 4 * h, 4)}, {v(self.vL16[0])}, {s(sWS, 4)}, {s(xo)} offen offset:{1024 * h} sc1'))
            k.wait(toks)
            self.flag(t0, False)
        else:
            tw, tw2, tr, ts = V.get(), V.get(), V.get(), V.get()
            k(f's_lshl_b32 {s(t0)}, {s(sW)}, 11')
            k(f's_add_u32 {s(t0)}, {s(t0)}, 16384')
            k(f'v_lshrrev_b32 {v(ts)}, 3, {v(self.vLane)}')
            k(f'v_and_b32 {v(tw)}, 7, {v(self.vLane)}')
            k(f'v_xor_b32 {v(tw)}, {v(tw)}, {v(ts)}')
            k(f'v_mul_u32_u24 {v(ts)}, 0xe000, {v(ts)}')
            k(f'v_lshl_add_u32 {v(ts)}, {v(tw)}, 4, {v(ts)}')
            k(f'v_add_u32 {v(tr)}, {s(t0)}, {v(self.vL16[0])}')
            k(f'v_lshl_add_u32 {v(tw)}, {v(self.vN)}, 7, {s(t0)}')
            k(f'v_lshl_add_u32 {v(tw)}, {v(self.vPc)}, 4, {v(tw)}')
            k(f'v_xor_b32 {v(tw2)}, 64, {v(tw)}')
            k(f's_lshl_b32 {s(t0)}, {s(sHALF)}, 10')
            k(f's_add_u32 {s(t0)}, {s(t0)}, {s(sG)}')
            k(f's_mul_i32 {s(t0)}, {s(t0)}, 896')
            k(f's_lshl_b32 {s(t1)}, {s(sCT)}, 7')
            k(f's_add_u32 {s(t0)}, {s(t0)}, {s(t1)}')
            k(f's_add_u32 {s(t1)}, {s(t0)}, {8 * 57344}')
            for h in range(2):
                for i in range(4):
                    k(f'v_cvt_pk_bf16_f32 {v(xr + 4 * h + i)}, {v(acc + 8 * h + 2 * i)}, {v(acc + 8 * h + 2 * i + 1)}')
                k(f'ds_write_b128 {v(tw2 if h else tw)}, {v(xr + 4 * h, 4)}')
            for u in range(2):
                k(f'ds_read_b128 {v(acc + 4 * u, 4)}, {v(tr)} offset:{1024 * u}')
            for u in range(2):
                k(f'buffer_store_dwordx4 {v(acc + 4 * u, 4)}, {v(ts)}, {s(sOUT, 4)}, {s(t1 if u else t0)} offen')
            for r in (tw, tw2, tr, ts):
                V.put(r)
        self.stamp(f'r3e{L}')
        V.put(hb, 4 * DEPTH)
        V.put(xr, 8)
        V.put(acc, 16)

    def build(self):
        k, V = self.k, self.V
        self.prologue()
        self.vM1, self.vM2 = V.get(24), V.get(16)
        k(f's_cmp_eq_u32 {s(sCT)}, 7')
        k('s_cbranch_scc1 L_helper')
        free0 = set(V.free)
        self.r1_first()
        for r in self.vJ:
            V.put(r)
        k('L_join0:')
        phases = []
        if self.stop != 'r1':
            z1 = self.r2(0)
            if self.stop != 'r2':
                self.g(0, z1)
                if self.stop != 'g':
                    k(f's_cmp_eq_u32 {s(sCT)}, 7')
                    k('s_cbranch_scc1 L_helper2')
                    self.r3(0)
                    if self.stop != 'r3':
                        self.r1_second()
                    k('L_join1:')
                    if self.stop not in ('r3', 'r1b'):
                        z1 = self.r2(1)
                        self.g(1, z1)
                        k(f's_cmp_eq_u32 {s(sCT)}, 7')
                        k('s_cbranch_scc1 L_fin')
                        self.r3(1)
        k('L_fin:')
        if self.diag:
            t = V.get()
            k(f's_lshl_b32 {s(sT[0])}, s2, 2')
            k(f's_add_u32 {s(sT[0])}, {s(sT[0])}, {s(sW)}')
            k(f's_lshl_b32 {s(sT[0])}, {s(sT[0])}, 8')
            k(f's_add_u32 {s(sT[0])}, {s(sT[0])}, {DIAG}')
            k(f'v_lshlrev_b32 {v(t)}, 2, {v(self.vLane)}')
            k(f'buffer_store_dword {v(self.vST)}, {v(t)}, {s(sWS, 4)}, {s(sT[0])} offen')
        k('s_endpgm')
        k.reset()
        V.free = free0
        k('L_helper:')
        self.helper()
        k('s_waitcnt vmcnt(0) lgkmcnt(0)')
        k('s_branch L_join0')
        if self.stop not in ('r1', 'r2', 'g'):
            k('L_helper2:')
            k('s_waitcnt vmcnt(0) lgkmcnt(0)')
            k('s_barrier')
            k('s_branch L_join1')
        k('L_end:')
        k('s_endpgm')
        return k.finalize()


HEADER = """; Kernarg layout (104 bytes, pointers only, base s[0:1]):
; @launch grid=(256,1,1) block=(256,1,1) lds=%d
.amdgcn_target "amdgcn-amd-amdhsa--gfx950"
.text
.globl %s
.p2align 8
.type %s,@function
%s:
"""
FOOTER = """.section .rodata,"a"
.p2align 6
.amdhsa_kernel %s
  .amdhsa_next_free_vgpr 512
  .amdhsa_next_free_sgpr 102
  .amdhsa_accum_offset 256
  .amdhsa_group_segment_fixed_size 0
  .amdhsa_kernarg_size 104
  .amdhsa_user_sgpr_count 2
  .amdhsa_user_sgpr_kernarg_segment_ptr 1
  .amdhsa_system_sgpr_workgroup_id_x 1
.end_amdhsa_kernel
"""


def generate(**kw):
    g = Gen(**kw)
    items = g.build()
    body = ''.join((i.text if i.kind == 'label' else '    ' + i.text) + '\n' for i in items)
    return HEADER % (LDS_BYTES, NAME, NAME, NAME) + body + FOOTER % NAME, g


if __name__ == '__main__':
    out = sys.argv[1] if len(sys.argv) > 1 else 'interleave_layers__spectral_fnet__mixer_gmlp__prompt.s'
    text, g = generate()
    open(out, 'w').write(text)
    print('written', out, 'lines', text.count('\n'), 'peak vgpr', g.V.peak)
```

```python
from hx import *
import time
def gen(pat, reps=256):
    L = []; A = L.append
    A('s_load_dwordx2 s[8:9], s[0:1], 0'); A('s_load_dwordx2 s[12:13], s[0:1], 8')
    A(f's_mov_b32 s10, {64<<20}'); A('s_mov_b32 s11, 0x20000'); A('s_mov_b32 s14, 0x100000'); A('s_mov_b32 s15, 0x20000')
    A('v_lshrrev_b32 v1, 6, v0'); A('s_nop 0'); A('v_readfirstlane_b32 s19, v1')
    A('v_and_b32 v2, 63, v0'); A('v_lshlrev_b32 v3, 4, v2'); A('v_lshlrev_b32 v4, 3, v2')
    A('s_lshl_b32 s20, s19, 14'); A('s_waitcnt lgkmcnt(0)')
    for i in range(16):
        A(f's_add_u32 m0, s20, {i*1024}'); A(f's_add_u32 s21, s20, {i*1024}'); A('buffer_load_dwordx4 v3, s[8:11], s21 offen lds')
    for i in range(30): A(f's_add_u32 s21, s21, 1024'); A(f'buffer_load_dwordx4 v[{64+4*i}:{67+4*i}], v3, s[8:11], s21 offen')
    for i in range(60): A(f's_add_u32 s21, s21, 1024'); A(f'buffer_load_dwordx4 a[{4*i}:{4*i+3}], v3, s[8:11], s21 offen')
    for i in range(16, 64): A(f'v_mov_b32 v{i}, 0')
    for i in range(240, 256): A(f'v_accvgpr_write_b32 a{i}, 0')
    A('s_waitcnt vmcnt(0)'); A('s_barrier'); A('.p2align 3')
    A('s_memtime s[28:29]'); A('s_memrealtime s[32:33]')
    ch, swap, accA = pat
    seq = []
    for step in range(7):
        for g in range(0, 16, ch):
            for rf in range(4):
                for ks in (range(g, g + ch) if not (swap == 2 and rf % 2) else reversed(range(g, g + ch))): seq.append((ks, rf if not (swap == 2 and (g // ch) % 2) else 3 - rf))
    for ks, rf in seq:
        z = f'v[{64+4*ks}:{67+4*ks}]'; w = f'a[{(16*ks+4*rf) % 240}:{(16*ks+4*rf) % 240 + 3}]'
        d = f'a[{240+4*rf}:{243+4*rf}]' if accA else f'v[{32+4*rf}:{35+4*rf}]'
        A(f'v_mfma_f32_16x16x32_bf16 {d}, {w if swap == 1 else z}, {z if swap == 1 else w}, {d}')
    A('s_waitcnt lgkmcnt(0)')
    A('s_memtime s[30:31]'); A('s_memrealtime s[34:35]'); A('s_waitcnt lgkmcnt(0)')
    A('s_sub_u32 s30, s30, s28'); A('s_sub_u32 s34, s34, s32'); A('v_mov_b32 v6, s30'); A('v_mov_b32 v7, s34')
    A('s_lshl2_add_u32 s24, s2, s19'); A('s_lshl_b32 s24, s24, 3')
    A('buffer_store_dwordx2 v[6:7], off, s[12:15], s24')
    return '\n'.join(L)
cases = {f'ch{c}s{w}a{a}': (c, w, a) for c in (1, 2, 4, 16) for w in (0, 2) for a in (0,)}
cases['ch1acc'] = (1,0,1); cases['ch1again'] = (1,0,0)
if __name__ == '__main__':
    gpu = os.path.exists('/dev/kfd')
    if gpu:
        rng = np.random.default_rng(0)
        data = DeviceBuffer.from_numpy((rng.standard_normal(32<<20).astype(np.float32).view(np.uint32) >> 16).astype(np.uint16)); out = DeviceBuffer(1<<20)
    for name, pat in cases.items():
        co = build(wrap('en_kernel', gen(pat), launch='grid=(256,1,1) block=(256,1,1) lds=65536'), 'en_kernel', 2, 'en')
        if not gpu: continue
        k = AsmKernel(co, 'en_kernel'); res = []
        for rep in range(31):
            time.sleep(0.001)
            k.launch((256,1,1), (256,1,1), pack_ptr_kernargs([data.ptr, out.ptr]), 65536); sync()
            o = out.to_numpy(np.uint32, (1024, 2)).mean(axis=0); res.append(o)
        c, t = np.median(np.array(res), axis=0)
        print(f'{name:8s} clk/rep {c/448:.1f} ns/rep {t*10/448:.2f} GHz {c/t/10:.2f} excess ns/rep {t*10/448 - c/448/2.4:.2f}')
        k.unload()
```
